```python
import torch

def _softmax(x, axis=-1):
    return torch.softmax(x, dim=axis)
def _gelu(x):
    return torch.nn.functional.gelu(x, approximate="tanh")
def _silu(x):
    return torch.nn.functional.silu(x)
def _sigmoid(x):
    return torch.sigmoid(x)
def _layernorm(x, axis=-1, eps=1e-5):
    m = x.mean(dim=axis, keepdim=True)
    v = x.var(dim=axis, keepdim=True, unbiased=False)
    return (x - m) / torch.sqrt(v + eps)
def _scatter_add(tgt, idx, src, axis=0):
    return tgt.clone().index_add_(axis, idx, src)
def _segment_sum(src, seg, n):
    out = torch.zeros((n,) + src.shape[1:], dtype=src.dtype)
    return out.index_add_(0, seg, src)
def _pad(x, pw):
    flat = tuple(v for pair in reversed(pw) for v in pair)
    return torch.nn.functional.pad(x, flat)

kernel_name = 'recurrent_scan__spectral_fnet__swiglu_ffn__prompt'

def setup_inputs():

    _w = (lambda a: (lambda t: t.to(torch.bfloat16) if t.is_floating_point() else t)(torch.as_tensor(a)))
    def _A_setup():
        B, S, D = 1, 2048, 576
        ns = torch.arange(S)[:, None] * torch.arange(S)[None, :]
        nd = torch.arange(D)[:, None] * torch.arange(D)[None, :]
        Ws_re = torch.cos(-2.0 * torch.pi * ns / S).to(float)
        Ws_im = torch.sin(-2.0 * torch.pi * ns / S).to(float)
        Wd_re = torch.cos(-2.0 * torch.pi * nd / D).to(float)
        Wd_im = torch.sin(-2.0 * torch.pi * nd / D).to(float)
        return {
            "x": _w((lambda *s: torch.randn(*s, dtype=torch.bfloat16) * 0.05)(B, S, D)),
            "dft_seq_re": _w(Ws_re),
            "dft_seq_im": _w(Ws_im),
            "dft_hid_re": _w(Wd_re),
            "dft_hid_im": _w(Wd_im),
        }
    _A_in = _A_setup()

    def _B_setup():
        B, S, D, F = 1, 2048, 576, 4608
        return {
            "x": _w((lambda *s: torch.randn(*s, dtype=torch.bfloat16) * 0.05)(B, S, D)),
            "w_gate": _w((lambda *s: torch.randn(*s, dtype=torch.bfloat16) * 0.05)(D, F)),
            "w_up": _w((lambda *s: torch.randn(*s, dtype=torch.bfloat16) * 0.05)(D, F)),
            "w_down": _w((lambda *s: torch.randn(*s, dtype=torch.bfloat16) * 0.05)(F, D)),
        }
    _B_in = _B_setup()

    return {
        "A_x": _A_in["x"],
        "A_dft_seq_re": _A_in["dft_seq_re"],
        "A_dft_seq_im": _A_in["dft_seq_im"],
        "A_dft_hid_re": _A_in["dft_hid_re"],
        "A_dft_hid_im": _A_in["dft_hid_im"],
        "B_x": _B_in["x"],
        "B_w_gate": _B_in["w_gate"],
        "B_w_up": _B_in["w_up"],
        "B_w_down": _B_in["w_down"],
    }

def reference(A_x, A_dft_seq_re, A_dft_seq_im, A_dft_hid_re, A_dft_hid_im, B_x, B_w_gate, B_w_up, B_w_down):
    def _A_ref(x, dft_seq_re, dft_seq_im, dft_hid_re, dft_hid_im):
        a = torch.einsum("bsd,ed->bse", x, dft_hid_re)
        b = torch.einsum("bsd,ed->bse", x, dft_hid_im)
        y = torch.einsum("ts,bse->bte", dft_seq_re, a) - torch.einsum("ts,bse->bte", dft_seq_im, b)
        return y

    def _B_ref(x, w_gate, w_up, w_down):
        g = _silu(x @ w_gate)
        u = x @ w_up
        return (g * u) @ w_down

    x = A_x
    xn = _layernorm(x, axis=-1)
    s = _A_ref(xn, A_dft_seq_re, A_dft_seq_im, A_dft_hid_re, A_dft_hid_im)
    g = _silu(_B_ref(xn, B_w_gate, B_w_up, B_w_down))
    return x + s * g
```

```python
HEADER = """; Kernarg layout for this problem (96 bytes, ptrs only, base s[0:1]):
"""


class Kernel:
    def __init__(self, name, grid, block, lds, vgpr, sgpr=102, accum=None):
        self.name = name
        self.grid = grid
        self.block = block
        self.lds = lds
        self.vgpr = vgpr
        self.accum = accum
        self.sgpr = sgpr
        self.lines = []
        self._uid = 0

    def __call__(self, s):
        for ln in s.split("\n"):
            ln = ln.strip()
            if ln:
                if ln.endswith(":"):
                    self.lines.append(ln)
                else:
                    self.lines.append("    " + ln)

    def c(self, s):
        self.lines.append("    ; " + s)

    def label(self, base):
        self._uid += 1
        return f"L_{self.name}_{base}_{self._uid}"

    def launch_line(self):
        g, b = self.grid, self.block
        return f"; @launch kernel={self.name} grid=({g[0]},{g[1]},{g[2]}) block=({b[0]},{b[1]},{b[2]}) lds={self.lds}"

    def text(self):
        out = [f".globl {self.name}", ".p2align 8", f".type {self.name},@function", f"{self.name}:"]
        out += self.lines
        return "\n".join(out) + "\n"

    def desc(self):
        acc = self.accum if self.accum is not None else ((self.vgpr + 3) // 4) * 4
        d = [f".amdhsa_kernel {self.name}",
             f"  .amdhsa_next_free_vgpr {self.vgpr}",
             f"  .amdhsa_next_free_sgpr {self.sgpr}",
             f"  .amdhsa_accum_offset {acc}",
             "  .amdhsa_group_segment_fixed_size 0",
             "  .amdhsa_kernarg_size 96",
             "  .amdhsa_user_sgpr_count 2",
             "  .amdhsa_user_sgpr_kernarg_segment_ptr 1",
             "  .amdhsa_system_sgpr_workgroup_id_x 1"]
        if self.grid[1] > 1:
            d.append("  .amdhsa_system_sgpr_workgroup_id_y 1")
        d += ["  .amdhsa_float_denorm_mode_32 3", "  .amdhsa_float_denorm_mode_16_64 3",
              "  .amdhsa_ieee_mode 0", "  .amdhsa_dx10_clamp 1"]
        d.append(".end_amdhsa_kernel")
        return "\n".join(d) + "\n"


def build(kernels):
    s = HEADER
    for k in kernels:
        s += k.launch_line() + "\n"
    s += '.amdgcn_target "amdgcn-amd-amdhsa--gfx950"\n.text\n'
    for k in kernels:
        s += k.text()
    s += '.section .rodata,"a"\n'
    for k in kernels:
        s += ".p2align 6\n" + k.desc()
    return s


def srd(k, sd, sbase, nbytes, add=0):
    if add:
        k(f"s_add_u32 s{sd}, s{sbase}, {add}")
        k(f"s_addc_u32 s{sd+1}, s{sbase+1}, 0")
    else:
        k(f"s_mov_b32 s{sd}, s{sbase}")
        k(f"s_mov_b32 s{sd+1}, s{sbase+1}")
    k(f"s_mov_b32 s{sd+2}, {nbytes}")
    k(f"s_mov_b32 s{sd+3}, 0x00020000")
```

```python
import sys
sys.path.insert(0, "gen")
from asmlib import *

KN = "recurrent_scan__spectral_fnet__swiglu_ffn__prompt"
LOG2E = 1.4426950408889634

EO_OFF = 0
EO_PAR = 36 * 16 * 1024
Z_OFF = 2 * EO_PAR
FP_OFF = 2 * 1024 * 1024
FP_CHUNK = 36 * 32 * 2048
WS_SIZE = 268435456

NSLOT = 9; SLOT = 8192
XB = NSLOT * SLOT
SCR = XB + 72 * 1024
LDS1 = SCR + 4096
AHEAD = 7
OOB = 0x7FFFFFF0


class Em:
    def __init__(self, k):
        self.k = k; self.vm = []; self.lg = []; self.buf = None
    def __call__(self, s):
        if self.buf is None: self.k(s)
        else: self.buf.append(s)
    def vmem(self, s, tag=None):
        self(s); self.vm.append(tag)
    def lds(self, s, tag=None):
        self(s); self.lg.append(tag)
    def cnt(self, q, tag):
        idx = max(i for i, t in enumerate(q) if t == tag)
        return len(q) - 1 - idx
    def wait(self, vm=None, lg=None):
        parts = []
        if vm is not None:
            n = 0 if vm == 'all' else self.cnt(self.vm, vm)
            parts.append(f"vmcnt({min(n, 63)})")
        if lg is not None:
            n = 0 if lg == 'all' else self.cnt(self.lg, lg)
            parts.append(f"lgkmcnt({min(n, 15)})")
        self("s_waitcnt " + " ".join(parts))


def xf(n):
    return f"a[{4*n}:{4*n+3}]" if n < 64 else f"v[{224+4*(n-64)}:{224+4*(n-64)+3}]"

def vr(b, n=4):
    return f"v[{b}:{b+n-1}]"

V_DMA = 1
V_TR1 = 2
V_TR2 = 4
V_HW = 6
V_XR = 7
V_FS = 9
V_DMA2 = 10
V_LANE = 11; V_C = 13; V_Q = 14
V_EO = 12
AF = 16
ACC = 32
ACC2 = 64
ET = 96
HREG = 16
GREG = 88
R = 112
GX = 112
FT = 128
S_C = 3; S_M = 4; S_W = 5
SRD_X = 8; SRD_A = 12; SRD_B = 16; SRD_WS = 20
S_WD = 24
S_M0 = 36; S_LOOP = 37; S_L = 39
S_KOFF = 40
S_FS = 58
S_T0 = 60


def gen_k1(name=KN + "_kernel", dbg=None):
    k = Kernel(name, (256, 1, 1), (256, 1, 1), LDS1, 512, accum=256)
    e = Em(k)
    END = k.label("end")
    k("s_cmp_ge_u32 s2, 256")
    k(f"s_cbranch_scc1 {END} ; @taken 0")
    k("s_load_dwordx2 s[60:61], s[0:1], 0")
    k("s_load_dwordx4 s[64:67], s[0:1], 24")
    k("s_load_dwordx4 s[68:71], s[0:1], 48")
    k(f"s_load_dwordx2 s[{S_WD}:{S_WD+1}], s[0:1], 64")
    k("s_load_dwordx2 s[72:73], s[0:1], 88")
    k(f"s_and_b32 s{S_C}, s2, 7")
    k(f"s_lshr_b32 s{S_M}, s2, 3")
    k(f"v_and_b32 v{V_LANE}, 63, v0")
    k("v_lshrrev_b32 v15, 6, v0")
    k(f"v_and_b32 v{V_C}, 15, v{V_LANE}")
    k(f"v_readfirstlane_b32 s{S_W}, v15")
    k(f"v_lshrrev_b32 v{V_Q}, 4, v{V_LANE}")
    k(f"s_lshl_b32 s6, s{S_M}, 4")
    k(f"v_add_u32 v15, s6, v{V_C}")
    k("s_nop 1")
    k(f"s_add_u32 s7, s{S_W}, 1")
    k("s_lshr_b32 s7, s7, 1")
    k("s_lshl_b32 s7, s7, 10")
    k(f"s_cmp_ge_u32 s{S_W}, 2")
    k("s_cselect_b32 s38, 512, 0")
    k(f"s_bitcmp1_b32 s{S_W}, 0")
    k("s_cselect_b64 vcc, -1, 0")
    k("v_sub_u32 v104, s7, v15")
    k("v_add_u32 v105, s7, v15")
    k("v_cndmask_b32 v104, v105, v104, vcc")
    k("v_cmp_eq_u32 vcc, 0, v15")
    k("v_mov_b32 v105, s38")
    k("s_nop 0")
    k("v_cndmask_b32 v105, 0, v105, vcc")
    k("v_sub_u32 v104, v104, v105")
    k("v_mul_u32_u24 v104, 0x480, v104")
    k(f"v_lshlrev_b32 v105, 4, v{V_Q}")
    k("v_add_u32 v104, v104, v105")
    k("s_waitcnt lgkmcnt(0)")
    srd(k, SRD_X, 60, 2048 * 1152)
    for ks in range(18):
        e.vmem(f"buffer_load_dwordx4 {vr(R+72+4*ks)}, v104, s[{SRD_X}:{SRD_X+3}], 0 offen offset:{64*ks}", ('x', ks))
    def haddr(vd, sT):
        k(f"s_lshl_b32 s74, s{sT}, 4")
        k(f"v_add_u32 v106, s74, v{V_C}")
        k("s_movk_i32 s75, 288")
        k("v_cmp_lt_u32 vcc, s75, v106")
        k("v_subrev_u32 v107, s75, v106")
        k("v_mov_b32 v108, s64"); k("v_mov_b32 v109, s65")
        k(f"v_mov_b32 v{vd}, s66"); k(f"v_mov_b32 v{vd+1}, s67")
        k("v_cndmask_b32 v106, v106, v107, vcc")
        k(f"v_cndmask_b32 v{vd}, v108, v{vd}, vcc")
        k(f"v_cndmask_b32 v{vd+1}, v109, v{vd+1}, vcc")
        k("v_mul_u32_u24 v106, 0x480, v106")
        k(f"v_lshlrev_b32 v107, 4, v{V_Q}")
        k("v_add_u32 v106, v106, v107")
        k(f"v_add_co_u32 v{vd}, vcc, v{vd}, v106")
        k("s_nop 1")
        k(f"v_addc_co_u32 v{vd+1}, vcc, 0, v{vd+1}, vcc")
    S_T = 76; S_TX = 77
    k(f"s_lshl_b32 s{S_T}, s{S_C}, 2")
    k(f"s_add_u32 s{S_T}, s{S_T}, s{S_W}")
    k(f"s_and_b32 s{S_TX}, s{S_C}, 3")
    k(f"s_add_u32 s{S_TX}, s{S_TX}, 32")
    haddr(110, S_TX)
    for ks in range(18):
        e.vmem(f"global_load_dwordx4 a[{4*ks}:{4*ks+3}], v[110:111], off offset:{64*ks}", ('hx', ks))
    haddr(88, S_T)
    for ks in range(18):
        e.vmem(f"global_load_dwordx4 {vr(HREG+4*ks)}, v[88:89], off offset:{64*ks}", ('h', ks))
    srd(k, SRD_A, 68, 576 * 9216)
    k(f"s_sub_u32 s{SRD_B}, s70, 1024")
    k(f"s_subb_u32 s{SRD_B+1}, s71, 0")
    k(f"s_mov_b32 s{SRD_B+2}, {576*9216+1024}")
    k(f"s_mov_b32 s{SRD_B+3}, 0x00020000")
    srd(k, SRD_WS, 72, WS_SIZE)
    for ks in range(18):
        k(f"s_mov_b32 s{S_KOFF+ks}, {ks*32*9216}")
    k(f"s_lshl_b32 s{S_M0}, s{S_W}, 11")
    k(f"s_mov_b32 s{S_L}, {hex(f2u(LOG2E))}")
    k(f"v_lshrrev_b32 v104, 3, v{V_LANE}")
    k(f"v_and_b32 v105, 7, v{V_LANE}")
    k(f"s_lshl_b32 s74, s{S_W}, 3")
    k("v_add_u32 v106, s74, v104")
    k(f"v_bfe_u32 v107, v{V_LANE}, 4, 1")
    k(f"s_and_b32 s75, s{S_W}, 1")
    k("s_lshl_b32 s75, s75, 1")
    k("v_add_u32 v107, s75, v107")
    k("v_lshlrev_b32 v107, 1, v107")
    k("v_xor_b32 v107, v105, v107")
    k("v_lshlrev_b32 v107, 4, v107")
    k("s_movk_i32 s74, 0x2400")
    k(f"v_mul_lo_u32 v{V_DMA}, v106, s74")
    k(f"v_add_u32 v{V_DMA}, v{V_DMA}, v107")
    k(f"s_mul_i32 s74, s{S_C}, 1152")
    k(f"v_add_u32 v{V_DMA}, s74, v{V_DMA}")
    k("v_and_b32 v106, 3, v104")
    k("v_lshrrev_b32 v104, 2, v104")
    k("v_lshlrev_b32 v104, 4, v104")
    k("v_add_u32 v106, v106, v104")
    k(f"s_lshl_b32 s74, s{S_W}, 2")
    k(f"s_mul_i32 s75, s{S_C}, 576")
    k("s_add_u32 s74, s74, s75")
    k("v_add_u32 v106, s74, v106")
    k("v_mul_u32_u24 v106, 0x480, v106")
    k(f"v_add_u32 v{V_DMA2}, v106, v107")

    def dma(idx, live_idx=None):
        slot = idx % NSLOT
        if idx < 162: so = S_KOFF + idx % 18
        else: so = S_KOFF + (idx - 162) % 9
        return [
            (1, lambda: e(f"s_add_u32 m0, s{S_M0}, {slot*SLOT}")),
            (1, lambda: e.vmem(f"buffer_load_dwordx4 v{V_DMA}, s[{SRD_A}:{SRD_A+3}], s{so} offen lds", ('dma', idx, 0))),
            (1, lambda: e.vmem(f"buffer_load_dwordx4 v{V_DMA}, s[{SRD_B}:{SRD_B+3}], s{so} offen offset:1024 lds", ('dma', idx, 1))),
        ]
    def dma_now(idx):
        f = dma(idx)
        f[0][1](); k("s_nop 0"); f[1][1](); f[2][1]()
    for idx in range(4): dma_now(idx)
    k(f"v_bfe_u32 v104, v{V_LANE}, 2, 2")
    k(f"v_and_b32 v105, 3, v{V_LANE}")
    k("v_lshrrev_b32 v106, 1, v105")
    k(f"s_lshl_b32 s74, s{S_W}, 1")
    k("v_add_u32 v106, s74, v106")
    k("v_and_b32 v105, 1, v105")
    k("v_lshlrev_b32 v105, 3, v105")
    k("v_lshrrev_b32 v107, 1, v104")
    k(f"v_and_b32 v108, 1, v{V_Q}")
    k("v_lshlrev_b32 v109, 1, v108")
    k("v_add_u32 v107, v107, v109")
    k("v_lshlrev_b32 v107, 1, v107")
    k("v_xor_b32 v107, v106, v107")
    k("v_lshlrev_b32 v107, 4, v107")
    k(f"v_lshlrev_b32 v{V_TR1}, 11, v{V_Q}")
    k("v_lshlrev_b32 v109, 7, v104")
    k(f"v_add_u32 v{V_TR1}, v{V_TR1}, v109")
    k(f"v_add_u32 v{V_TR1}, v{V_TR1}, v107")
    k(f"v_add_u32 v{V_TR1}, v{V_TR1}, v105")
    k(f"v_add_u32 v{V_TR1+1}, 0x10000, v{V_TR1}")
    k(f"v_lshlrev_b32 v{V_XR}, 4, v{V_LANE}")
    k(f"v_add_u32 v{V_XR}, {XB}, v{V_XR}")
    k(f"v_add_u32 v{V_XR+1}, 0x10000, v{V_XR}")
    k(f"s_and_b32 s74, s{S_W}, 1")
    k("s_lshl_b32 s74, s74, 3")
    k(f"s_lshr_b32 s75, s{S_W}, 1")
    k("s_lshl_b32 s75, s75, 12")
    k("s_add_u32 s74, s74, s75")
    k(f"v_add_u32 v{V_HW}, s74, v{V_XR}")
    k(f"v_lshlrev_b32 v{V_FS}, 9, v108")
    k(f"v_and_b32 v104, 1, v{V_C}")
    k("v_lshlrev_b32 v104, 8, v104")
    k(f"v_add_u32 v{V_FS}, v{V_FS}, v104")
    k(f"v_lshrrev_b32 v104, 1, v{V_C}")
    k("v_lshlrev_b32 v104, 5, v104")
    k(f"v_add_u32 v{V_FS}, v{V_FS}, v104")
    k(f"v_lshrrev_b32 v104, 1, v{V_Q}")
    k("v_lshlrev_b32 v104, 4, v104")
    k(f"v_add_u32 v{V_FS}, v{V_FS}, v104")
    k(f"s_mul_i32 s{S_FS}, s{S_C}, {FP_CHUNK}")
    k(f"s_lshl_b32 s74, s{S_W}, 16")
    k(f"s_add_u32 s{S_FS}, s{S_FS}, s74")
    k(f"s_lshl_b32 s74, s{S_M}, 11")
    k(f"s_add_u32 s{S_FS}, s{S_FS}, s74")
    k(f"s_add_u32 s{S_FS}, s{S_FS}, {FP_OFF}")
    k(f"s_and_b32 s74, s{S_M}, 1")
    k("s_lshl_b32 s74, s74, 9")
    k(f"v_lshrrev_b32 v104, 1, v{V_Q}")
    k("v_lshlrev_b32 v104, 8, v104")
    k(f"v_lshlrev_b32 v105, 4, v{V_C}")
    k("v_add_u32 v104, v104, v105")
    k("v_lshlrev_b32 v105, 3, v108")
    k("v_add_u32 v104, v104, v105")
    k(f"v_add_u32 v{V_EO}, s74, v104")

    S_ONE = 60; S_LO = 61; S_HI = 62
    k(f"s_mov_b32 s{S_ONE}, 0x3f803f80")
    k(f"s_mov_b32 s{S_LO}, 0x00003f80")
    k(f"s_mov_b32 s{S_HI}, 0x3f800000")
    raw = lambda i: R + 72 + i
    for ks in range(18):
        e.wait(vm=('x', ks))
        for j in range(4):
            i = 4 * ks + j
            c_in = "0" if ks == 0 else f"v{104+j}"
            k(f"v_dot2_f32_bf16 v{104+j}, v{raw(i)}, s{S_ONE}, {c_in}")
    for idx in range(4, AHEAD): dma_now(idx)
    k("v_add_f32 v104, v104, v105"); k("v_add_f32 v106, v106, v107"); k("v_add_f32 v104, v104, v106")
    def qreduce(v, t):
        k(f"v_mov_b32 v{t}, v{v}"); k("s_nop 1")
        k(f"v_permlane32_swap_b32 v{v}, v{t}"); k(f"v_add_f32 v{v}, v{v}, v{t}")
        k(f"v_mov_b32 v{t}, v{v}"); k("s_nop 1")
        k(f"v_permlane16_swap_b32 v{v}, v{t}"); k(f"v_add_f32 v{v}, v{v}, v{t}")
    qreduce(104, 105)
    k(f"v_mul_f32 v108, {hex(f2u(-1.0/576))}, v104")
    for i in range(72):
        k(f"v_dot2_f32_bf16 v{R+2*i}, v{raw(i)}, s{S_LO}, v108")
        k(f"v_dot2_f32_bf16 v{R+2*i+1}, v{raw(i)}, s{S_HI}, v108")
    for i in range(72):
        a = 104 + 2 * (i % 2)
        if i < 2: k(f"v_pk_mul_f32 v[{a}:{a+1}], v[{R+2*i}:{R+2*i+1}], v[{R+2*i}:{R+2*i+1}]")
        else: k(f"v_pk_fma_f32 v[{a}:{a+1}], v[{R+2*i}:{R+2*i+1}], v[{R+2*i}:{R+2*i+1}], v[{a}:{a+1}]")
    k("v_add_f32 v104, v104, v105"); k("v_add_f32 v106, v106, v107"); k("v_add_f32 v104, v104, v106")
    qreduce(104, 105)
    k(f"s_mov_b32 s63, {hex(f2u(1e-5))}")
    k(f"s_mov_b32 s74, {hex(f2u(1.0/576))}")
    k("v_mov_b32 v105, s63")
    k("v_fma_f32 v104, v104, s74, v105")
    k("v_rsq_f32 v104, v104")
    k("s_nop 0")
    k(f"v_mul_f32 v108, {hex(f2u(LOG2E))}, v104")
    k(f"s_lshl_b32 s74, s{S_W}, 10")
    k(f"v_add_u32 v110, s74, v{V_XR}")
    k(f"v_add_u32 v111, 0x10000, v110")
    for ks in range(18):
        for j in range(4):
            i = 4 * ks + j
            k(f"v_pk_mul_f32 v[{R+2*i}:{R+2*i+1}], v[{R+2*i}:{R+2*i+1}], v[108:109] op_sel_hi:[1,0]")
        for j in range(4):
            i = 4 * ks + j
            k(f"v_cvt_pk_bf16_f32 v{R+i}, v{R+2*i}, v{R+2*i+1}")
        off = ks * 4096
        if ks == 12: e.wait(lg=('xw', 4))
        e.lds(f"ds_write_b128 v{110 if off < 65536 else 111}, {vr(R+4*ks)} offset:{off % 65536} ; @W x", ('xw', ks))
    for ks in range(18):
        if ks == 0: e.wait(vm=('hx', 17))
        a = 96 + 4 * (ks % 2)
        cin = "0" if ks < 2 else vr(a)
        k(f"v_mfma_f32_16x16x32_bf16 {vr(a)}, {vr(R+4*ks)}, a[{4*ks}:{4*ks+3}], {cin}")
    k("s_nop 7")
    for r in range(4):
        k(f"v_add_f32 v{96+r}, v{96+r}, v{100+r}")
    k(f"v_lshlrev_b32 v104, 4, v{V_LANE}")
    k(f"s_lshl_b32 s74, s{S_W}, 10")
    k(f"s_add_u32 s74, s74, {SCR}")
    k(f"v_add_u32 v105, s74, v104")
    e.lds(f"ds_write_b128 v105, {vr(96)} ; @W sc")
    k(f"v_add_u32 v104, {SCR}, v104")
    e.wait(lg='all')
    k("s_barrier")
    for rb in range(4):
        e.lds(f"ds_read_b128 {vr(GX+4*rb)}, v104 offset:{rb*1024} ; @R sc 1", ('gx', rb))
    LOOK = 10
    def xread(n):
        va = V_XR if n < 64 else V_XR + 1
        e.lds(f"ds_read_b128 {xf(n)}, v{va} offset:{(n*1024) % 65536} ; @R x 18", ('xr', n))
    for n in range(LOOK): xread(n)
    e.wait(vm=('h', 17))
    for n in range(72):
        ks, rb = n // 4, n % 4
        e.wait(lg=('xr', n))
        cin = "0" if ks == 0 else vr(GREG + 4 * rb)
        k(f"v_mfma_f32_16x16x32_bf16 {vr(GREG+4*rb)}, {xf(n)}, {vr(HREG+4*ks)}, {cin}")
        if n + LOOK < 72: xread(n + LOOK)
    def trreads(idx):
        slot = idx % NSLOT
        b = idx % 2 if idx < 162 else (idx - 162 + 0) % 2
        b = idx % 2
        va = V_TR1 + (1 if slot == 8 else 0)
        base = (slot * SLOT) % 65536
        offs = [0, 512, 1024, 1536]
        out = []
        for n, o in enumerate(offs):
            d = AF + 8 * b + 2 * n
            out.append((1, (lambda d=d, o=o, n=n: e.lds(f"ds_read_b64_tr_b16 v[{d}:{d+1}], v{va} offset:{base+o}", ('tr', idx, n)))))
        return out
    e.wait(vm=('dma', 3, 1))
    k("s_barrier")
    for c_, f in trreads(0): f()

    def fold(G, sT, tile_is_extra):
        L = []
        V = lambda s: L.append((1, lambda s=s: e(s)))
        sg = FT
        U = FT + 4; Vv = FT + 8; E = FT + 12; O = FT + 16; Zr = FT + 20; t = FT + 1
        P = FT + 24
        V(f"s_lshl_b32 s74, s{sT}, 4")
        V(f"v_add_u32 v{t}, s74, v{V_C}")
        V(f"s_movk_i32 s75, 288")
        V(f"v_cmp_lt_u32 vcc, s75, v{t}")
        V(f"v_mov_b32 v{sg}, 1.0")
        V(f"v_lshlrev_b32 v{t+1}, 2, v{t}")
        V(f"v_cndmask_b32 v{sg}, v{sg}, -1.0, vcc")
        L.pop()
        V(f"v_mov_b32 v{t+2}, -1.0")
        V(f"v_cndmask_b32 v{sg}, v{sg}, v{t+2}, vcc")
        for r in range(4):
            V(f"v_fma_f32 v{U+r}, v{sg}, v{G+12+r}, v{G+r}")
            V(f"v_fma_f32 v{Vv+r}, v{sg}, v{G+4+r}, v{G+8+r}")
        for r in range(4):
            V(f"v_add_f32 v{E+r}, v{U+r}, v{Vv+r}")
            V(f"v_sub_f32 v{O+r}, v{U+r}, v{Vv+r}")
        V(f"s_cmp_eq_u32 s{S_M}, 0\ns_cselect_b32 s74, 16, 0")
        V(f"v_cmp_gt_u32 vcc, s74, v{V_LANE}")
        V(f"v_add_f32 v{U}, v{G}, v{G+4}")
        V(f"v_sub_f32 v{U+1}, v{G}, v{G+4}")
        V(f"v_fma_f32 v{Zr}, v{sg}, v{G+12}, v{G+8}")
        V(f"v_cndmask_b32 v{E}, v{E}, v{U}, vcc")
        V(f"v_cndmask_b32 v{O}, v{O}, v{U+1}, vcc")
        V(f"v_mov_b32 v{t+2}, {hex(OOB)}")
        V(f"v_cndmask_b32 v{t+1}, v{t+2}, v{t+1}, vcc")
        V(f"v_cvt_pk_bf16_f32 v{P}, v{E}, v{E+1}")
        V(f"v_cvt_pk_bf16_f32 v{P+1}, v{E+2}, v{E+3}")
        V(f"v_cvt_pk_bf16_f32 v{P+2}, v{O}, v{O+1}")
        V(f"v_cvt_pk_bf16_f32 v{P+3}, v{O+2}, v{O+3}")
        V(f"s_lshl_b32 s74, s{sT}, 14")
        V(f"s_lshr_b32 s75, s{S_M}, 1")
        V(f"s_lshl_b32 s75, s75, 10")
        V(f"s_add_u32 s74, s74, s75")
        if tile_is_extra:
            V(f"s_lshr_b32 s75, s{S_C}, 2")
            V(f"s_or_b32 s75, s75, s{S_W}")
            V(f"s_cmp_eq_u32 s75, 0\ns_cselect_b32 s75, 0, {hex(OOB)}")
            V(f"v_or_b32 v{t+3}, s75, v{V_EO}")
            V(f"v_or_b32 v{t+1}, s75, v{t+1}")
            veo = t + 3
        else:
            veo = V_EO
        V(f"s_add_u32 s75, s74, {EO_PAR}")
        L.append((1, lambda: e.vmem(f"buffer_store_dwordx2 v[{P}:{P+1}], v{veo}, s[{SRD_WS}:{SRD_WS+3}], s74 offen sc1")))
        L.append((1, lambda: e.vmem(f"buffer_store_dwordx2 v[{P+2}:{P+3}], v{veo}, s[{SRD_WS}:{SRD_WS+3}], s75 offen sc1")))
        V(f"s_mov_b32 s74, {Z_OFF}")
        L.append((1, lambda: e.vmem(f"buffer_store_dword v{Zr}, v{t+1}, s[{SRD_WS}:{SRD_WS+3}], s74 offen sc1")))
        return L

    def epi1(G):
        b = G % 2
        L = []
        V = lambda c, s: L.append((c, lambda s=s: e(s)))
        for rb in range(4):
            g = ACC + 32 * b + 4 * rb; u = g + 16
            t = ET + 12 * (rb % 2); p = t + 4; h = t + 8
            for r in range(4): V(2, f"v_exp_f32 v{t+r}, -v{g+r}")
            for r in range(4): V(1, f"v_mul_f32 v{p+r}, v{g+r}, v{u+r}")
            for r in range(4): V(1, f"v_fma_f32 v{t+r}, v{t+r}, s{S_L}, s{S_L}")
            for r in range(4): V(2, f"v_rcp_f32 v{t+r}, v{t+r}")
            for r in range(4): V(1, f"v_mul_f32 v{p+r}, v{p+r}, v{t+r}")
            V(1, f"v_cvt_pk_bf16_f32 v{h}, v{p}, v{p+1}")
            V(1, f"v_cvt_pk_bf16_f32 v{h+1}, v{p+2}, v{p+3}")
            L.append((1, lambda h=h, rb=rb: e.lds(f"ds_write_b64 v{V_HW}, v[{h}:{h+1}] offset:{rb*1024} ; @W h {rb}")))
        V(1, f"v_add_u32 v{V_HW}, {2*4096}, v{V_HW}")
        return L

    def epi2(CG):
        b = CG % 2
        L = []
        V = lambda s: L.append((1, lambda s=s: e(s)))
        for P in range(2):
            a0 = ACC2 + 16 * b + 8 * P; a1 = a0 + 4
            t = ET + 4 * P
            V(f"v_cvt_pk_bf16_f32 v{t}, v{a0}, v{a0+1}")
            V(f"v_cvt_pk_bf16_f32 v{t+1}, v{a0+2}, v{a0+3}")
            V(f"v_cvt_pk_bf16_f32 v{t+2}, v{a1}, v{a1+1}")
            V(f"v_cvt_pk_bf16_f32 v{t+3}, v{a1+2}, v{a1+3}")
        for P in range(2):
            t = ET + 4 * P
            V(f"v_permlane16_swap_b32 v{t}, v{t+2}")
            V(f"v_permlane16_swap_b32 v{t+1}, v{t+3}")
        for P in range(2):
            t = ET + 4 * P
            L.append((1, lambda t=t, P=P: e.vmem(f"buffer_store_dwordx4 {vr(t)}, v{V_FS}, s[{SRD_WS}:{SRD_WS+3}], s{S_FS} offen offset:{1024*P} sc1")))
        V(f"s_add_u32 s{S_FS}, s{S_FS}, {4*65536}")
        return L

    def step(j, mfmas, extra, pre_lg=None):
        if j % 3 == 0:
            e.wait(vm=('dma', j + 3, 1), lg='all'); e("s_barrier")
        else:
            e.wait(lg=pre_lg or ('tr', j, 3))
        fixed = trreads(j + 1) + dma(j + AHEAD)
        fill = fixed[:4]
        rest = fixed[4:]
        ex = list(extra)
        seq = fill + [rest[0]]
        if ex: seq.append(ex.pop(0))
        seq.append(rest[1])
        if ex: seq.append(ex.pop(0))
        seq.append(rest[2])
        seq += ex
        if len(seq) > 5 and seq[4] is rest[0] and seq[5] is rest[1]:
            seq.insert(5, (0, lambda: e("s_nop 0")))
        tot = sum(c for c, _ in seq)
        acc = 0; pos = 0
        for i, mtext in enumerate(mfmas):
            e(mtext)
            target = max(2 * (i + 1), tot * (i + 1) / len(mfmas)) if tot <= 16 else tot * (i + 1) / len(mfmas)
            while pos < len(seq) and acc + seq[pos][0] <= target + 0.01:
                seq[pos][1](); acc += seq[pos][0]; pos += 1
        while pos < len(seq):
            seq[pos][1](); pos += 1

    def split(L, nsteps, first=0):
        tot = sum(c for c, _ in L); out = [[] for _ in range(nsteps)]
        n = nsteps - first; acc = 0; s = first
        for it in L:
            while s < nsteps - 1 and acc >= tot * (s - first + 1) / n - 0.01: s += 1
            out[s].append(it); acc += it[0]
        return out

    def group1(G):
        b = G % 2
        if G == 0:
            L = fold(GREG, S_T, False) + fold(GX, S_TX, True)
            ch = split(L, 12, 0) + [[] for _ in range(6)]
        else:
            ch = split(epi1(G - 1), 18, 1)
        for ks in range(18):
            j = 18 * G + ks
            ex = list(ch[ks])
            if ks == 18 - AHEAD:
                if G % 2 == 0 and G > 0:
                    sw = k.label("sw")
                    def swblock(sw=sw):
                        e(f"s_cmp_lg_u32 s{S_LOOP}, 1")
                        e(f"v_add_u32 v{V_DMA}, 128, v{V_DMA}")
                        e(f"s_cbranch_scc1 {sw} ; @taken 1,1,1,0")
                        e(f"v_mov_b32 v{V_DMA}, v{V_DMA2}")
                        e(f"s_mov_b32 s{SRD_A}, s{S_WD}")
                        e(f"s_mov_b32 s{SRD_A+1}, s{S_WD+1}")
                        e(f"s_mov_b32 s{SRD_A+2}, {4608*1152}")
                        e(f"s_add_u32 s{SRD_B}, s{S_WD}, {32*1152-1024}")
                        e(f"s_addc_u32 s{SRD_B+1}, s{S_WD+1}, 0")
                        e(f"s_mov_b32 s{SRD_B+2}, {4608*1152}")
                        for jj in range(9):
                            e(f"s_mov_b32 s{S_KOFF+jj}, {jj*64*1152}")
                        e(f"{sw}:")
                    ex = [(2, swblock)] + ex
                    pre = True
                else:
                    ex = [(1, lambda: e(f"v_add_u32 v{V_DMA}, 128, v{V_DMA}"))] + ex
                first = ex.pop(0)
                first[1]()
            mf = []
            for rb in range(4):
                for gu in range(2):
                    a = ACC + 32 * b + 16 * gu + 4 * rb
                    A = AF + 8 * (j % 2) + 4 * gu
                    cin = "0" if ks == 0 else vr(a)
                    mf.append(f"v_mfma_f32_16x16x32_bf16 {vr(a)}, {vr(A)}, {xf(4*ks+rb)}, {cin}")
            step(j, mf, ex)

    def group2(CG):
        b = CG % 2
        j0 = 162 + 9 * CG
        hq = None
        if CG == 0:
            ch = split(epi1(8), 6, 0) + [[], [], []]
            def hread(n):
                va = V_XR if n < 64 else V_XR + 1
                return (1, lambda: e.lds(f"ds_read_b128 {xf(n)}, v{va} offset:{(n*1024) % 65536} ; @R h {n//4}", ('hr', n)))
            for n in range(8): hread(n)[1]()
        else:
            ch = split(epi2(CG - 1), 5, 1) + [[], [], [], []]
        for s in range(9):
            j = j0 + s
            ex = list(ch[s])
            pre_lg = None
            if CG == 0:
                if s < 8:
                    ex = [hread(n) for n in range(8 * (s + 1), 8 * (s + 2))] + ex
            if s == 9 - AHEAD:
                e(f"v_add_u32 v{V_DMA}, 128, v{V_DMA}")
                if CG % 2 == 0 and CG > 0:
                    e(f"s_cmp_eq_u32 s{S_LOOP}, 1")
                    e(f"s_cselect_b32 s{SRD_A+2}, 0, s{SRD_A+2}")
                    e(f"s_cselect_b32 s{SRD_B+2}, 0, s{SRD_B+2}")
            mf = []
            for hf in range(2):
                for rb in range(4):
                    a = ACC2 + 16 * b + 4 * rb
                    A = AF + 8 * (j % 2) + 4 * hf
                    cin = "0" if (s == 0 and hf == 0) else vr(a)
                    mf.append(f"v_mfma_f32_16x16x32_bf16 {vr(a)}, {vr(A)}, {xf(4*(2*s+hf)+rb)}, {cin}")
            if CG == 0:
                pre_lg = ('hr', 8 * s + 7)
            step(j, mf, ex, pre_lg=pre_lg)

    def capture(fn, *a):
        e.buf = []
        fn(*a)
        b = e.buf; e.buf = None
        return b
    import re
    def norm(lines):
        return [re.sub(r'L_\w+', 'LBL', x) for x in lines]

    for x in capture(group1, 0): k(x)
    bodies = [capture(group1, 1 + 2 * i) + capture(group1, 2 + 2 * i) for i in range(4)]
    for i in range(1, 4):
        assert norm(bodies[i]) == norm(bodies[0]), f"phase-1 loop body {i} differs:\n" + "\n".join(
            f"{a} | {b}" for a, b in zip(norm(bodies[0]), norm(bodies[i])) if a != b)
    L1 = k.label("p1")
    k(f"s_mov_b32 s{S_LOOP}, 4")
    k(f"{L1}:")
    for x in bodies[0]: k(x)
    k(f"s_sub_u32 s{S_LOOP}, s{S_LOOP}, 1")
    k(f"s_cmp_lg_u32 s{S_LOOP}, 0")
    k(f"s_cbranch_scc1 {L1} ; @loop 4")
    for x in capture(group2, 0): k(x)
    bodies = [capture(group2, 1 + 2 * i) + capture(group2, 2 + 2 * i) for i in range(4)]
    for i in range(1, 4):
        assert norm(bodies[i]) == norm(bodies[0]), f"phase-2 loop body {i} differs:\n" + "\n".join(
            f"{a} | {b}" for a, b in zip(norm(bodies[0]), norm(bodies[i])) if a != b)
    L2 = k.label("p2")
    k(f"s_mov_b32 s{S_LOOP}, 4")
    k(f"{L2}:")
    for x in bodies[0]: k(x)
    k(f"s_sub_u32 s{S_LOOP}, s{S_LOOP}, 1")
    k(f"s_cmp_lg_u32 s{S_LOOP}, 0")
    k(f"s_cbranch_scc1 {L2} ; @loop 4")
    k("s_nop 7")
    for c_, f in epi2(8):
        f()
        k("s_nop 1")
    k("s_waitcnt vmcnt(0)")
    k(f"{END}:")
    k("s_endpgm")
    return k


import struct
def f2u(x):
    return struct.unpack("<I", struct.pack("<f", x))[0]


if __name__ == "__main__":
    k = gen_k1()
    txt = build([k])
    open("k1.s", "w").write(txt)
    import sim
    sim.check(txt, k.name)
```

```python
import re, sys

def parse_regs(tok):
    tok = tok.strip()
    neg = tok.lstrip('-').strip('|')
    m = re.fullmatch(r'([vas])\[(\d+):(\d+)\]', neg)
    if m:
        return [(m.group(1), i) for i in range(int(m.group(2)), int(m.group(3)) + 1)]
    m = re.fullmatch(r'([vas])(\d+)', neg)
    if m:
        return [(m.group(1), int(m.group(2)))]
    if neg in ('vcc',):
        return [('s', 'vcc')]
    if neg in ('vcc_lo', 'vcc_hi'):
        return [('s', 'vcc')]
    if neg == 'm0':
        return [('s', 'm0')]
    if neg in ('exec', 'exec_lo', 'exec_hi'):
        return [('s', 'exec')]
    return []

TRANS = ('v_exp_f32', 'v_log_f32', 'v_rcp_f32', 'v_rsq_f32', 'v_sqrt_f32', 'v_sin_f32', 'v_cos_f32')

class Ins:
    def __init__(self, text, lineno):
        self.text = text
        self.lineno = lineno
        code, _, com = text.partition(';')
        self.com = com.strip()
        code = code.strip()
        parts = code.split(None, 1)
        self.op = parts[0]
        rest = parts[1] if len(parts) > 1 else ''
        ops = [o.strip() for o in rest.split(',')] if rest else []
        mods = []
        if ops:
            last = ops[-1].split()
            ops[-1] = last[0] if last else ''
            mods = last[1:]
        full = rest
        self.mods = full
        clean = re.sub(r'(op_sel|op_sel_hi|neg_lo|neg_hi)\s*:\s*\[[^\]]*\]', '', rest)
        ops = [o.strip() for o in clean.split(',')] if clean.strip() else []
        if ops:
            last = ops[-1].split()
            ops[-1] = last[0] if last else ''
        self.ops = ops
        self.classify()

    def classify(self):
        op, ops = self.op, self.ops
        R = [parse_regs(o) for o in ops]
        self.dst, self.src = [], []
        self.kind = 'other'
        self.lds_dma = False
        if op.startswith('v_mfma'):
            self.kind = 'mfma'
            self.dst = R[0]; self.srcA = R[1]; self.srcB = R[2]; self.srcC = R[3]
            self.src = R[1] + R[2] + R[3]
        elif op.startswith('v_'):
            self.kind = 'valu'
            if op.startswith('v_cmp'):
                self.dst = R[0]; self.src = sum(R[1:], [])
            elif op.startswith('v_permlane') and 'swap' in op:
                self.dst = R[0] + R[1]; self.src = R[0] + R[1]
            elif op.startswith('v_add_co') or op.startswith('v_sub_co'):
                self.dst = R[0] + R[1]; self.src = sum(R[2:], [])
            elif op.startswith('v_addc_co') or op.startswith('v_subb_co'):
                self.dst = R[0] + R[1]; self.src = sum(R[2:], [])
            else:
                self.dst = R[0]; self.src = sum(R[1:], [])
                if op.startswith('v_cndmask') and len(ops) == 3:
                    self.src = self.src + [('s', 'vcc')]
                if op.startswith('v_fmac') or op.startswith('v_mac') or op.startswith('v_writelane'):
                    self.src = self.src + R[0]
        elif op.startswith('ds_read') or op.startswith('ds_bpermute') or op.startswith('ds_swizzle'):
            self.kind = 'ds'; self.dst = R[0]; self.src = sum(R[1:], [])
        elif op.startswith('ds_write'):
            self.kind = 'ds'; self.src = sum(R, [])
        elif op.startswith('buffer_load'):
            self.kind = 'vmem'
            if re.search(r'\blds\b', self.mods):
                self.lds_dma = True
                self.src = sum(R, []) + [('s', 'm0')]
            else:
                self.dst = R[0]; self.src = sum(R[1:], [])
        elif op.startswith('buffer_store'):
            self.kind = 'vmem'; self.src = sum(R, []); self.stdata = R[0]
        elif op.startswith('global_load'):
            self.kind = 'vmem'; self.dst = R[0]; self.src = sum(R[1:], [])
        elif op.startswith('global_store'):
            self.kind = 'vmem'; self.src = sum(R, []); self.stdata = R[1]
        elif op.startswith('s_load'):
            self.kind = 'smem'; self.dst = R[0]; self.src = sum(R[1:], [])
        elif op in ('s_waitcnt', 's_barrier', 's_nop', 's_endpgm', 's_setprio', 's_branch', 's_sleep') or op.startswith('s_cbranch'):
            self.kind = 'ctl'
        elif op.startswith('s_cmp'):
            self.kind = 'salu'; self.src = sum(R, []); self.dst = [('s', 'scc')]
        elif op.startswith('s_'):
            self.kind = 'salu'; self.dst = R[0]; self.src = sum(R[1:], [])
            if 'saveexec' in op:
                self.dst = self.dst + [('s', 'exec')]
        self.trans = op.replace('_e64', '').replace('_e32', '') in TRANS


def load(text, kname):
    lines = text.split('\n')
    prog = []; labels = {}
    on = False
    for i, ln in enumerate(lines):
        s = ln.strip()
        if s == kname + ':':
            on = True; continue
        if not on: continue
        if s.startswith('.globl') or s.startswith('.section'):
            break
        if not s or s.startswith(';') or s.startswith('.'):
            continue
        if s.endswith(':') and ' ' not in s:
            labels[s[:-1]] = len(prog); continue
        prog.append(Ins(s, i + 1))
    return prog, labels


def trace(prog, labels, conds):
    out = []; pc = 0; cnt = {}
    while pc < len(prog):
        ins = prog[pc]
        out.append(ins)
        if len(out) > 2000000: raise Exception("trace too long")
        if ins.op == 's_endpgm': break
        if ins.op == 's_branch':
            pc = labels[ins.ops[0]]; continue
        if ins.op.startswith('s_cbranch'):
            m = re.search(r'@loop (\d+)', ins.com)
            taken = False
            if m:
                n = int(m.group(1)); c = cnt.get(pc, 0) + 1
                if c < n: taken = True; cnt[pc] = c
                else: cnt[pc] = 0
            else:
                m = re.search(r'@taken ([01,]+)', ins.com)
                if m:
                    pat = m.group(1).split(','); c = cnt.get(pc, 0)
                    taken = pat[c % len(pat)] == '1'; cnt[pc] = c + 1
                else:
                    m = re.search(r'@cond (\w+)', ins.com)
                    if m: taken = m.group(1) in conds
                    else: raise Exception(f"unannotated branch line {ins.lineno}: {ins.text}")
            if taken:
                pc = labels[ins.ops[0]]; continue
        pc += 1
    return out


def check(text, kname, conds=(), nring=9, verbose=True, quiet=False):
    prog, labels = load(text, kname)
    tr = trace(prog, labels, conds)
    errs = []
    def err(i, msg):
        if len(errs) < 40:
            errs.append(f"[{kname}] line {tr[i].lineno} (t={i}): {msg} :: {tr[i].text}")
    last = {}
    st = 0
    pos = []
    for i, ins in enumerate(tr):
        pos.append(st)
        if ins.op == 's_nop': st += int(ins.ops[0], 0) + 1
        else: st += 1
    wr = {}
    cread = {}
    stdata = {}
    def dist(i, j):
        return pos[i] - pos[j] - 1 if tr[j].op != 's_nop' else 0
    for i, ins in enumerate(tr):
        for r in ins.src:
            if r in wr:
                j = wr[r]; p = tr[j]; d = dist(i, j)
                need = 0
                if p.kind == 'valu' and r[0] in 'va':
                    if ins.kind == 'mfma': need = 2
                    elif ins.op.startswith('v_permlane'): need = 2
                    elif ins.op.startswith('v_readfirstlane') or ins.op.startswith('v_readlane'): need = 1
                    elif p.trans and ins.kind == 'valu' and not ins.trans: need = 1
                    elif p.trans and ins.kind in ('ds', 'vmem'): need = 1
                    elif 'dpp' in ins.mods or 'row_' in ins.mods: need = 2
                if p.kind == 'valu' and r[0] == 's':
                    if ins.kind == 'valu': need = 2
                    elif ins.kind == 'vmem': need = 5
                    elif ins.kind == 'salu': need = 1
                if p.kind == 'mfma':
                    if ins.kind == 'mfma':
                        if r in ins.srcA or r in ins.srcB: need = 8
                        elif ins.srcC == p.dst: need = 0
                        else: need = 6
                    else: need = 8
                if p.kind == 'salu' and r == ('s', 'm0') and ins.lds_dma: need = 1
                if d < need: err(i, f"hazard RAW {r} from line {p.lineno} ({p.op}) dist {d} < {need}")
        for r in ins.dst:
            if r in wr and tr[wr[r]].kind == 'mfma' and ins.kind != 'mfma':
                d = dist(i, wr[r])
                if d < 8: err(i, f"hazard WAW after mfma {r} dist {d} < 8")
            if r in wr and tr[wr[r]].kind == 'mfma' and ins.kind == 'mfma' and ins.dst != tr[wr[r]].dst:
                d = dist(i, wr[r])
                if d < 6: err(i, f"hazard mfma overlap WAW {r} dist {d}")
            if r in cread and ins.kind == 'valu':
                d = dist(i, cread[r])
                if d < 3: err(i, f"hazard WAR srcC {r} dist {d} < 3")
            if r in stdata and ins.kind == 'valu':
                d = dist(i, stdata[r])
                if d < 2: err(i, f"hazard store-data WAR {r} dist {d} < 2")
        for r in ins.dst:
            if ins.kind in ('valu', 'mfma', 'salu'): wr[r] = i
            elif r in wr: del wr[r]
        if ins.kind == 'mfma':
            for r in ins.srcC: cread[r] = i
        if ins.kind == 'vmem' and hasattr(ins, 'stdata') and ('x4' in ins.op or 'x3' in ins.op):
            for r in ins.stdata: stdata[r] = i
    scc_w = None
    for i, ins in enumerate(tr):
        rd = ins.op.startswith('s_cselect') or ins.op.startswith('s_cbranch_scc') or ins.op.startswith('s_addc') or ins.op.startswith('s_subb')
        if rd and scc_w is not None:
            w_ = tr[scc_w]
            ok = w_.op.startswith('s_cmp') or w_.op.startswith('s_bitcmp') if not (ins.op.startswith('s_addc') or ins.op.startswith('s_subb')) else (scc_w == i - 1)
            if not ok: err(i, f"SCC read from {w_.text}")
        if ins.kind == 'salu' and not (ins.op.startswith('s_mov') or ins.op.startswith('s_cselect') or ins.op.startswith('s_mul_i32')):
            scc_w = i
    vq = []; lq = []
    pend = {}
    barriers = []
    dma_idx = -1; rd_idx = -1
    writes = {}
    region_reads = {}
    region_cur = {}
    hcount = {}
    smem_out = []
    def complete(e, i):
        e['done'] = i
        for r in e['dst']:
            if pend.get(r) is e: del pend[r]
    def synced(e, i):
        if e.get('done') is None: return False
        return any(e['done'] <= b < i for b in barriers)
    maxv = maxl = 0
    for i, ins in enumerate(tr):
        if ins.op == 's_waitcnt':
            m = re.search(r'vmcnt\((\d+)\)', ins.text)
            if m:
                n = int(m.group(1))
                assert n <= 63, ins.text
                while len(vq) > n: complete(vq.pop(0), i)
            m = re.search(r'lgkmcnt\((\d+)\)', ins.text)
            if m:
                n = int(m.group(1))
                assert n <= 15, ins.text
                if smem_out and n == 0:
                    for e in smem_out: complete(e, i)
                    smem_out = []
                while len(lq) > n: complete(lq.pop(0), i)
            continue
        if ins.op == 's_barrier':
            barriers.append(i); continue
        for r in ins.src + ins.dst:
            if r in pend and not ('@dummy' in ins.com and '@dummy' in pend[r]['ins'].com and r in ins.dst):
                err(i, f"uses {r} with pending load from line {pend[r]['ins'].lineno}")
        if ins.kind in ('vmem', 'ds', 'smem'):
            e = dict(ins=ins, dst=list(ins.dst), i=i, done=None)
            for r in ins.dst: pend[r] = e
            if ins.kind == 'vmem':
                vq.append(e); maxv = max(maxv, len(vq))
                if len(vq) > 63: err(i, f"vm queue {len(vq)} > 63")
            elif ins.kind == 'ds':
                lq.append(e); maxl = max(maxl, len(lq))
                if len(lq) > 15: err(i, f"lds queue {len(lq)} > 15")
            else: smem_out.append(e)
            c = ins.com
            tagw = tagr = None
            m = re.search(r'@dma s=(\d+) h=(\d)', c)
            if m:
                s, h = int(m.group(1)), int(m.group(2))
                if h == 0: dma_idx += 1
                if dma_idx % nring != s: err(i, f"dma idx {dma_idx} slot {s} mismatch")
                tagw = (f"slot{s}", dma_idx)
            m = re.search(r'@rd s=(\d+) n=(\d)', c)
            if m:
                s, n = int(m.group(1)), int(m.group(2))
                if n == 0: rd_idx += 1
                if rd_idx % nring != s: err(i, f"rd idx {rd_idx} slot {s} mismatch")
                tagr = (f"slot{s}", rd_idx, 2)
            m = re.search(r'@W (\w+)(?: (\w+))?', c)
            if m:
                name = m.group(1)
                if name == 'h':
                    key = m.group(2); g = hcount.get(key, 0); hcount[key] = g + 1
                    tagw = (f"xh{g}", ('h', g))
                elif name == 'x':
                    tagw = ("xall", ('x', 0))
                else:
                    tagw = (name, 0)
            m = re.search(r'@R (\w+)(?: (\w+))?', c)
            if m:
                name = m.group(1)
                if name == 'h':
                    g = int(m.group(2)) // 2
                    tagr = (f"xh{g}", ('h', g), 4)
                elif name == 'x':
                    tagr = ("xall", ('x', 0), int(m.group(2)))
                else:
                    tagr = (name, 0, int(m.group(2) or 1))
            if tagw:
                region, tag = tagw
                rl = list(region_reads.get(region, []))
                if region.startswith('xh'): rl += region_reads.get('xall', [])
                for r_ in rl:
                    if r_['tag'] != tag and not synced(r_, i):
                        err(i, f"LDS WAR: write {tag} to {region} while read at line {r_['ins'].lineno} of {r_['tag']} not barrier-synced")
                        break
                region_reads[region] = [r_ for r_ in region_reads.get(region, []) if not synced(r_, i)]
                region_cur[region] = tag
                writes.setdefault((region, tag), []).append(e)
            if tagr:
                region, tag, nexp = tagr
                e['tag'] = tag
                ws = writes.get((region, tag), [])
                if len(ws) < nexp: err(i, f"LDS RAW: read {tag} from {region}: only {len(ws)} of {nexp} writes issued")
                elif region_cur.get(region) != tag: err(i, f"LDS RAW: {region} holds {region_cur.get(region)} not {tag}")
                else:
                    for w_ in ws:
                        if not synced(w_, i):
                            err(i, f"LDS RAW: read {tag}: write at line {w_['ins'].lineno} not barrier-synced"); break
                region_reads.setdefault(region, []).append(e)
        if ins.op == 's_endpgm':
            if any(e['ins'].lds_dma for e in vq): err(i, "LDS DMA outstanding at endpgm")
    nm = sum(1 for x in tr if x.kind == 'mfma')
    if verbose:
        print(f"sim {kname} conds={conds}: trace {len(tr)} instrs, {nm} mfma, {len(barriers)} barriers, max vm {maxv} max lds {maxl}, dma_idx {dma_idx} rd_idx {rd_idx}, errors {len(errs)}")
    if not quiet:
        for e in errs: print("  ", e)
    return errs

def autofix(text, kname, condlist=((),)):
    for _ in range(200):
        fixed = False
        for conds in condlist:
            errs = check(text, kname, conds, verbose=False, quiet=True)
            for er in errs:
                m = re.search(r'line (\d+) \(t=\d+\): hazard .* dist (-?\d+) < (\d+)', er)
                if m:
                    ln, d, need = int(m.group(1)), int(m.group(2)), int(m.group(3))
                    lines = text.split('\n')
                    lines.insert(ln - 1, f"    s_nop {need - d - 1}")
                    text = '\n'.join(lines)
                    fixed = True
                    break
            if fixed: break
        if not fixed: return text
    raise Exception("autofix did not converge")

if __name__ == "__main__":
    text = open(sys.argv[1]).read()
    check(text, sys.argv[2], tuple(sys.argv[3:]))
```

```python
import sys
sys.path.insert(0, "gen")
from asmlib import *
from k1 import Em, vr, f2u, EO_OFF, EO_PAR, Z_OFF, FP_OFF, FP_CHUNK, WS_SIZE, OOB, LOG2E

ROWB = 272
ARR = 32 * ROWB
LDS2 = 4 * ARR

S_P = 3; S_I = 4; S_J = 5; S_W = 6
SRD_S = 8; SRD_WS = 12; SRD_X = 16; SRD_O = 20
S_EO0 = 24; S_EO1 = 25; S_Z = 26; S_SGN = 27
S_FC = 28
S_LO = 36; S_HI = 37; S_L2 = 38
V_LANE = 1; V_C = 2; V_Q = 3
V_S = 4
V_EO = 6
V_Z = 10
V_F = 14
ACC = 16
ZR = 48
FR = 64
XR = 160
PQ = 172
Y = 220
FS = 228
T = 236
V_FN = 244
V_X = 247
V_LW = 248
V_LR = 249
V_SG = 250


def gen_k2(name="fnet_k2_kernel"):
    k = Kernel(name, (198, 1, 1), (256, 1, 1), LDS2, 512, accum=256)
    e = Em(k)
    END = k.label("end")
    k("s_cmp_ge_u32 s2, 198")
    k(f"s_cbranch_scc1 {END} ; @taken 0")
    k("s_load_dwordx2 s[40:41], s[0:1], 0")
    k("s_load_dwordx4 s[44:47], s[0:1], 8")
    k("s_load_dwordx2 s[42:43], s[0:1], 72")
    k("s_load_dwordx2 s[48:49], s[0:1], 88")
    k("s_and_b32 s50, s2, 7")
    k("s_lshr_b32 s51, s2, 3")
    k("s_mul_i32 s52, s51, 43")
    k("s_lshr_b32 s52, s52, 8")
    k("s_mul_i32 s53, s52, 6")
    k(f"s_sub_u32 s{S_J}, s51, s53")
    k(f"s_lshr_b32 s{S_P}, s50, 2")
    k("s_and_b32 s50, s50, 3")
    k("s_lshl_b32 s50, s50, 2")
    k(f"s_add_u32 s{S_I}, s50, s52")
    k("s_sub_u32 s50, s2, 192")
    k("s_cmp_ge_u32 s2, 192")
    k(f"s_cselect_b32 s{S_J}, s50, s{S_J}")
    k(f"s_cselect_b32 s{S_P}, 0, s{S_P}")
    k(f"s_cselect_b32 s{S_I}, 16, s{S_I}")
    k(f"v_and_b32 v{V_LANE}, 63, v0")
    k("v_lshrrev_b32 v15, 6, v0")
    k(f"v_and_b32 v{V_C}, 15, v{V_LANE}")
    k(f"v_readfirstlane_b32 s{S_W}, v15")
    k(f"v_lshrrev_b32 v{V_Q}, 4, v{V_LANE}")
    k("s_nop 1")
    k(f"s_and_b32 s54, s{S_W}, 1")
    k(f"s_lshr_b32 s55, s{S_W}, 1")
    k(f"s_lshl_b32 s56, s{S_I}, 6")
    k(f"s_add_u32 s56, s56, s{S_P}")
    k(f"v_lshlrev_b32 v15, 1, v{V_C}")
    k("v_add_u32 v15, s56, v15")
    k("v_lshlrev_b32 v15, 12, v15")
    k(f"v_lshlrev_b32 v{V_S}, 4, v{V_Q}")
    k(f"v_add_u32 v{V_S}, v{V_S}, v15")
    k("s_lshl_b32 s57, s55, 9")
    k(f"v_add_u32 v{V_S}, s57, v{V_S}")
    k(f"v_add_u32 v{V_S+1}, {32*4096}, v{V_S}")
    k(f"v_lshlrev_b32 v15, 4, v{V_LANE}")
    k(f"v_add_u32 v{V_EO+1}, 16384, v15")
    k(f"v_add_u32 v{V_EO+2}, 32768, v15")
    k(f"s_mov_b32 s58, {hex(OOB)}")
    k("v_mov_b32 v251, s58")
    k(f"v_cmp_eq_u32 vcc, 0, v{V_C}")
    k(f"v_add_u32 v{V_EO+3}, 49152, v15")
    k(f"v_cndmask_b32 v{V_EO+3}, v251, v{V_EO+3}, vcc")
    k(f"s_cmp_eq_u32 s{S_J}, 0")
    k("s_cselect_b32 s59, s54, 0")
    k(f"s_cmp_eq_u32 s{S_J}, 5")
    k("s_cselect_b32 s60, s54, 0")
    k("s_cmp_eq_u32 s59, 1")
    k(f"s_cselect_b32 s59, {hex(OOB)}, 0")
    k("s_cmp_eq_u32 s60, 1")
    k(f"s_cselect_b32 s60, {hex(OOB)}, 0")
    k("v_mov_b32 v252, s59")
    k(f"v_cndmask_b32 v252, 0, v252, vcc")
    k(f"v_or_b32 v{V_EO}, v252, v15")
    k(f"v_or_b32 v{V_EO+3}, s60, v{V_EO+3}")
    k(f"s_mul_i32 s61, s{S_P}, {EO_PAR}")
    k(f"s_mul_i32 s62, s{S_J}, {3*16384}")
    k("s_add_u32 s61, s61, s62")
    k(f"s_mul_i32 s62, s54, {18*16384}")
    k("s_add_u32 s61, s61, s62")
    k("s_lshl_b32 s62, s55, 13")
    k(f"s_add_u32 s{S_EO0}, s61, s62")
    k(f"s_add_u32 s{S_EO1}, s{S_EO0}, 4096")
    k(f"s_xor_b32 s61, s54, s{S_P}")
    k("s_or_b32 s61, s61, s55")
    k("s_cmp_eq_u32 s61, 0")
    k(f"s_cselect_b32 s61, 0, {hex(OOB)}")
    k(f"s_mul_i32 s62, s54, {288*4}")
    k(f"s_mul_i32 s63, s{S_J}, {48*4}")
    k("s_add_u32 s62, s62, s63")
    k(f"s_add_u32 s{S_Z}, s62, {Z_OFF}")
    k(f"v_lshlrev_b32 v{V_Z}, 4, v{V_Q}")
    k(f"v_or_b32 v{V_Z}, s61, v{V_Z}")
    k(f"v_or_b32 v{V_Z+1}, s60, v{V_Z}")
    k(f"v_and_b32 v15, 1, v{V_C}")
    k(f"v_xor_b32 v15, s{S_P}, v15")
    k("v_lshlrev_b32 v15, 31, v15")
    k(f"v_or_b32 v{V_SG}, 0x3f800000, v15")
    k("s_waitcnt lgkmcnt(0)")
    k("s_cmp_eq_u32 s54, 0")
    k(f"s_cselect_b32 s{SRD_S}, s44, s46")
    k(f"s_cselect_b32 s{SRD_S+1}, s45, s47")
    k(f"s_mov_b32 s{SRD_S+2}, {2048*4096}")
    k(f"s_mov_b32 s{SRD_S+3}, 0x00020000")
    srd(k, SRD_WS, 48, WS_SIZE)
    srd(k, SRD_X, 40, 2048 * 1152)
    srd(k, SRD_O, 42, 2048 * 1152)
    WSR = f"s[{SRD_WS}:{SRD_WS+3}]"
    for n in range(4):
        vz = V_Z + (1 if n == 3 else 0)
        e.vmem(f"buffer_load_dwordx4 {vr(ZR+4*n)}, v{vz}, {WSR}, s{S_Z} offen offset:{64*n}", ('z', n))
    def sfrag(kl, tt): return f"a[{128+8*kl+4*tt}:{128+8*kl+4*tt+3}]"
    def efrag(kl, n): return f"a[{16*kl+4*n}:{16*kl+4*n+3}]"
    for kl in range(8):
        for tt in range(2):
            e.vmem(f"buffer_load_dwordx4 {sfrag(kl,tt)}, v{V_S+tt}, s[{SRD_S}:{SRD_S+3}], 0 offen offset:{64*kl}", ('s', kl, tt))
        for n in range(4):
            so = S_EO0 if kl < 4 else S_EO1
            e.vmem(f"buffer_load_dwordx4 {efrag(kl,n)}, v{V_EO+n}, {WSR}, s{so} offen offset:{1024*(kl%4)}", ('e', kl, n))
    k(f"v_and_b32 v15, 0xfe, v{V_LANE}")
    k("v_add_u32 v15, s56, v15")
    k(f"v_and_b32 v251, 1, v{V_LANE}")
    k("s_movk_i32 s61, 512")
    k("v_sub_u32 v252, 1024, v15")
    k("v_cmp_gt_u32 vcc, s61, v15")
    k("v_cndmask_b32 v252, v252, v15, vcc")
    k("s_cmp_eq_u32 s55, 0")
    k("s_cselect_b32 s62, 0, 3")
    k("s_cselect_b32 s63, 1, 2")
    k("s_cselect_b32 s64, 2, 3")
    k("v_mov_b32 v253, s63")
    k("v_mov_b32 v254, s62")
    k("v_cndmask_b32 v253, v253, v254, vcc")
    k("v_cmp_eq_u32 vcc, s61, v15")
    k("v_mov_b32 v254, s64")
    k("v_cndmask_b32 v253, v253, v254, vcc")
    k("v_cndmask_b32 v252, v252, 0, vcc")
    k.lines.pop()
    k("v_mov_b32 v254, 0")
    k("v_cndmask_b32 v252, v252, v254, vcc")
    k("v_lshrrev_b32 v254, 4, v252")
    k("v_lshlrev_b32 v254, 11, v254")
    k("v_lshlrev_b32 v253, 9, v253")
    k("v_add_u32 v254, v254, v253")
    k("v_and_b32 v253, 1, v252")
    k("v_lshlrev_b32 v253, 8, v253")
    k("v_add_u32 v254, v254, v253")
    k("v_bfe_u32 v253, v252, 1, 3")
    k("v_lshlrev_b32 v253, 5, v253")
    k("v_add_u32 v254, v254, v253")
    k("v_lshlrev_b32 v251, 4, v251")
    k("v_add_u32 v254, v254, v251")
    k("v_sub_u32 v253, 0x800, v15")
    k("s_cmp_eq_u32 s55, 0")
    k("s_cselect_b64 vcc, -1, 0")
    k("s_cselect_b32 s62, 0, 1")
    k("s_movk_i32 s64, 1023")
    k("s_cselect_b32 s63, 1025, s64")
    k("v_cndmask_b32 v253, v253, v15, vcc")
    k("v_subrev_u32 v15, s62, v15")
    k("v_cmp_gt_u32 vcc, s63, v15")
    k("v_mul_u32_u24 v253, 0x480, v253")
    k("v_add_u32 v253, v253, v251")
    k(f"s_mul_i32 s62, s{S_J}, 3")
    k("s_sub_u32 s63, 33, s62")
    k("s_cmp_eq_u32 s54, 0")
    k("s_cselect_b32 s62, s62, s63")
    k("s_lshl_b32 s63, s62, 5")
    k("v_add_u32 v253, s63, v253")
    k("v_mov_b32 v252, s58")
    k(f"v_cndmask_b32 v{V_X}, v252, v253, vcc")
    k("s_lshl_b32 s63, s62, 16")
    k("v_add_u32 v254, s63, v254")
    k(f"v_cndmask_b32 v{V_FN}, v252, v254, vcc")
    k(f"v_add_u32 v{V_FN+1}, 0x10000, v{V_FN}")
    k(f"v_add_u32 v{V_FN+2}, 0x20000, v{V_FN}")
    for c in range(8):
        k(f"s_mov_b32 s{S_FC+c}, {FP_OFF + c*FP_CHUNK}")
    def fload(n, c):
        e.vmem(f"buffer_load_dwordx4 {vr(FR+32*n+4*c)}, v{V_FN+n}, {WSR}, s{S_FC+c} offen", ('f', n, c))
    def xload(n):
        e.vmem(f"buffer_load_dwordx4 {vr(XR+4*n)}, v{V_X}, s[{SRD_X}:{SRD_X+3}], 0 offen offset:{32*n}", ('x', n))
    later = []
    for n in range(3):
        later.append(lambda n=n: xload(n))
        for c in range(8): later.append(lambda n=n, c=c: fload(n, c))
    for _ in range(11): later.pop(0)()
    k(f"v_mul_u32_u24 v{V_LW}, {ROWB}, v{V_C}")
    k(f"v_lshlrev_b32 v15, 4, v{V_Q}")
    k(f"v_add_u32 v{V_LW}, v{V_LW}, v15")
    k(f"s_mul_i32 s63, s{S_W}, {ARR}")
    k(f"v_add_u32 v{V_LW}, s63, v{V_LW}")
    k(f"v_lshrrev_b32 v15, 1, v{V_LANE}")
    k(f"v_mul_u32_u24 v{V_LR}, {ROWB}, v15")
    k(f"v_lshlrev_b32 v15, 1, v251")
    k("v_sub_u32 v253, 32, v15")
    k("s_cmp_eq_u32 s54, 0")
    k("s_cselect_b64 vcc, -1, 0")
    k("v_cndmask_b32 v15, v253, v15, vcc")
    k(f"v_add_u32 v{V_LR}, v{V_LR}, v15")
    k("s_xor_b32 s62, s54, s55")
    k("s_cmp_eq_u32 s62, 0")
    k(f"s_cselect_b32 s{S_SGN}, -1.0, 1.0")
    k(f"s_mov_b32 s{S_LO}, 0x00003f80")
    k(f"s_mov_b32 s{S_HI}, 0x3f800000")
    k(f"s_mov_b32 s{S_L2}, {hex(f2u(LOG2E*LOG2E))}")
    e.wait(vm=('z', 3))
    k(f"v_cmp_gt_u32 vcc, 16, v{V_LANE}")
    k("v_mov_b32 v252, s59")
    k("v_cndmask_b32 v252, 0, v252, vcc")
    k("v_cmp_eq_u32 vcc, 0, v252")
    k(f"v_cndmask_b32 v{ZR}, 0, v{ZR}, vcc")
    for tt in range(2):
        for n in range(4):
            for r in range(4):
                k(f"v_mul_f32 v{ACC+16*tt+4*n+r}, v{V_SG}, v{ZR+4*n+r}")
    for kl in range(8):
        e.wait(vm=('e', kl, 3))
        for n in range(4):
            for tt in range(2):
                a = ACC + 16 * tt + 4 * n
                k(f"v_mfma_f32_16x16x32_bf16 {vr(a)}, {efrag(kl,n)}, {sfrag(kl,tt)}, {vr(a)}")
        for _ in range(6 if kl else 10):
            if later: later.pop(0)()
    assert not later
    k("s_nop 7")
    for tt in range(2):
        for n in range(4):
            e.lds(f"ds_write_b128 v{V_LW}, {vr(ACC+16*tt+4*n)} offset:{tt*16*ROWB + 64*n} ; @W pq")
    e.wait(lg='all')
    k("s_barrier")
    BWD = k.label("bwd"); DONE = k.label("done")
    k("s_cmp_eq_u32 s54, 1")
    k(f"s_cbranch_scc1 {BWD}")
    st = (list(e.vm), list(e.lg))
    for bwd in range(2):
        e.vm, e.lg = list(st[0]), list(st[1])
        if bwd: k(f"{BWD}:")
        for n in range(3):
            nq = 3 if bwd else 2
            base = (2 - n) * 64 if bwd else n * 64
            for wv in (0, 2, 1, 3):
                for qd in range(nq):
                    e.lds(f"ds_read_b128 {vr(PQ+12*wv+4*qd)}, v{V_LR} offset:{wv*ARR + base + 16*qd} ; @R pq 8", ('pq', n, wv, qd))
            for c in range(8):
                e.wait(vm=('f', n, c))
                for u in range(8):
                    sel = S_HI if u & 1 else S_LO
                    cin = "0" if c == 0 else f"v{FS+u}"
                    k(f"v_dot2_f32_bf16 v{FS+u}, v{FR+32*n+4*c+u//2}, s{sel}, {cin}")
            idx = (lambda u: 8 - u) if bwd else (lambda u: u)
            e.wait(lg=('pq', n, 2, nq - 1))
            for u in range(8):
                k(f"v_add_f32 v{Y+u}, v{PQ+idx(u)}, v{PQ+24+idx(u)}")
            e.wait(lg=('pq', n, 3, nq - 1))
            for u in range(8):
                k(f"v_add_f32 v{T+u}, v{PQ+12+idx(u)}, v{PQ+36+idx(u)}")
            for u in range(8):
                k(f"v_fma_f32 v{Y+u}, v{T+u}, s{S_SGN}, v{Y+u}")
            for u in range(8):
                k(f"v_exp_f32 v{T+u}, -v{FS+u}")
            for u in range(0, 8, 2):
                k(f"v_pk_mul_f32 v[{Y+u}:{Y+u+1}], v[{Y+u}:{Y+u+1}], v[{FS+u}:{FS+u+1}]")
            for u in range(8):
                k(f"v_fma_f32 v{T+u}, v{T+u}, s{S_L2}, s{S_L2}")
            for u in range(8):
                k(f"v_rcp_f32 v{T+u}, v{T+u}")
            k("s_nop 0")
            for u in range(0, 8, 2):
                k(f"v_pk_mul_f32 v[{Y+u}:{Y+u+1}], v[{Y+u}:{Y+u+1}], v[{T+u}:{T+u+1}]")
            e.wait(vm=('x', n))
            for u in range(8):
                sel = S_HI if u & 1 else S_LO
                k(f"v_dot2_f32_bf16 v{Y+u}, v{XR+4*n+u//2}, s{sel}, v{Y+u}")
            for u in range(0, 8, 2):
                k(f"v_cvt_pk_bf16_f32 v{XR+4*n+u//2}, v{Y+u}, v{Y+u+1}")
            e.vmem(f"buffer_store_dwordx4 {vr(XR+4*n)}, v{V_X}, s[{SRD_O}:{SRD_O+3}], 0 offen offset:{32*n}", ('o', n))
        if not bwd:
            k(f"s_branch {DONE}")
    k(f"{DONE}:")
    k(f"{END}:")
    k("s_endpgm")
    return k


if __name__ == "__main__":
    import sim
    from k1 import gen_k1
    k1 = gen_k1(); k2 = gen_k2()
    txt = build([k1, k2])
    txt = sim.autofix(txt, k2.name, [(), ("bwd",)])
    out = sys.argv[1] if len(sys.argv) > 1 else "main.s"
    open(out, "w").write(txt)
    sim.check(txt, k1.name)
    sim.check(txt, k2.name, ())
    sim.check(txt, k2.name, ("bwd",))
```

```python
import sys
sys.path.insert(0, "gen")
from asmlib import *

KN = "recurrent_scan__spectral_fnet__swiglu_ffn__prompt"
LOG2E = 1.4426950408889634

EO_OFF = 0
EO_PAR = 36 * 16 * 1024
Z_OFF = 2 * EO_PAR
FP_OFF = 2 * 1024 * 1024
FP_CHUNK = 36 * 32 * 2048
WS_SIZE = 268435456

NSLOT = 9; SLOT = 8192
XB = NSLOT * SLOT
SCR = XB + 72 * 1024
LDS1 = SCR + 4096
import os
NB = int(os.environ.get("NB", "3"))
AHEAD = NSLOT + 1 - NB
OOB = 0x7FFFFFF0
import os
PF = int(os.environ.get("PF", "1"))
PF_STRIDE = int(os.environ.get("PF_STRIDE", "128"))
PF_DST = 4


class Em:
    def __init__(self, k):
        self.k = k; self.vm = []; self.lg = []; self.buf = None
    def __call__(self, s):
        if self.buf is None: self.k(s)
        else: self.buf.append(s)
    def vmem(self, s, tag=None):
        self(s); self.vm.append(tag)
    def lds(self, s, tag=None):
        self(s); self.lg.append(tag)
    def cnt(self, q, tag):
        idx = max(i for i, t in enumerate(q) if t == tag)
        return len(q) - 1 - idx
    def wait(self, vm=None, lg=None):
        parts = []
        if vm is not None:
            n = 0 if vm == 'all' else self.cnt(self.vm, vm)
            parts.append(f"vmcnt({min(n, 63)})")
        if lg is not None:
            n = 0 if lg == 'all' else self.cnt(self.lg, lg)
            parts.append(f"lgkmcnt({min(n, 15)})")
        self("s_waitcnt " + " ".join(parts))


def xf(n):
    return f"a[{4*n}:{4*n+3}]" if n < 64 else f"v[{224+4*(n-64)}:{224+4*(n-64)+3}]"

def vr(b, n=4):
    return f"v[{b}:{b+n-1}]"

V_DMA = 1
V_TR1 = 2
V_TR2 = 4
V_HW = 6
V_XR = 7
V_FS = 9
V_DMA2 = 10
V_LANE = 11; V_C = 13; V_Q = 14
V_EO = 12
AF = 16
ACC = 32
ACC2 = 64
ET = 96
HREG = 16
GREG = 88
R = 112
GX = 112
FT = 128
S_C = 3; S_M = 4; S_W = 5
SRD_X = 8; SRD_A = 12; SRD_B = 16; SRD_WS = 20
S_WD = 24
S_M0 = 36; S_LOOP = 37; S_L = 39
S_KOFF = 40
S_FS = 58
S_T0 = 60


def gen_k1(name=KN + "_kernel", dbg=None, fine=False):
    k = Kernel(name, (256, 1, 1), (256, 1, 1), LDS1, 512, accum=256)
    e = Em(k)
    END = k.label("end")
    k("s_cmp_ge_u32 s2, 256")
    k(f"s_cbranch_scc1 {END} ; @taken 0")
    tsn = [0]
    def ts():
        if dbg:
            k(f"s_memrealtime s[{80+2*tsn[0]}:{81+2*tsn[0]}]"); tsn[0] += 1
    def tsf():
        if fine: ts()
    cyn = [0]
    def cy():
        if dbg:
            k(f"s_memtime s[{26+2*cyn[0]}:{27+2*cyn[0]}]"); cyn[0] += 1
    ts()
    k("s_load_dwordx2 s[60:61], s[0:1], 0")
    k("s_load_dwordx4 s[64:67], s[0:1], 24")
    k("s_load_dwordx4 s[68:71], s[0:1], 48")
    k(f"s_load_dwordx2 s[{S_WD}:{S_WD+1}], s[0:1], 64")
    k("s_load_dwordx2 s[72:73], s[0:1], 88")
    k(f"s_and_b32 s{S_C}, s2, 7")
    k(f"s_lshr_b32 s{S_M}, s2, 3")
    k(f"v_and_b32 v{V_LANE}, 63, v0")
    k("v_lshrrev_b32 v15, 6, v0")
    k(f"v_and_b32 v{V_C}, 15, v{V_LANE}")
    k(f"v_readfirstlane_b32 s{S_W}, v15")
    k(f"v_lshrrev_b32 v{V_Q}, 4, v{V_LANE}")
    k(f"s_lshl_b32 s6, s{S_M}, 4")
    k(f"v_add_u32 v15, s6, v{V_C}")
    k("s_nop 1")
    k(f"s_add_u32 s7, s{S_W}, 1")
    k("s_lshr_b32 s7, s7, 1")
    k("s_lshl_b32 s7, s7, 10")
    k(f"s_cmp_ge_u32 s{S_W}, 2")
    k("s_cselect_b32 s38, 512, 0")
    k(f"s_bitcmp1_b32 s{S_W}, 0")
    k("s_cselect_b64 vcc, -1, 0")
    k("v_sub_u32 v104, s7, v15")
    k("v_add_u32 v105, s7, v15")
    k("v_cndmask_b32 v104, v105, v104, vcc")
    k("v_cmp_eq_u32 vcc, 0, v15")
    k("v_mov_b32 v105, s38")
    k("s_nop 0")
    k("v_cndmask_b32 v105, 0, v105, vcc")
    k("v_sub_u32 v104, v104, v105")
    k("v_mul_u32_u24 v104, 0x480, v104")
    k(f"v_lshlrev_b32 v105, 4, v{V_Q}")
    k("v_add_u32 v104, v104, v105")
    k("s_waitcnt lgkmcnt(0)")
    tsf()
    srd(k, SRD_X, 60, 2048 * 1152)
    for ks in range(18):
        e.vmem(f"buffer_load_dwordx4 {vr(R+72+4*ks)}, v104, s[{SRD_X}:{SRD_X+3}], 0 offen offset:{64*ks}", ('x', ks))
    def haddr(vd, sT):
        k(f"s_lshl_b32 s74, s{sT}, 4")
        k(f"v_add_u32 v106, s74, v{V_C}")
        k("s_movk_i32 s75, 288")
        k("v_cmp_lt_u32 vcc, s75, v106")
        k("v_subrev_u32 v107, s75, v106")
        k("v_mov_b32 v108, s64"); k("v_mov_b32 v109, s65")
        k(f"v_mov_b32 v{vd}, s66"); k(f"v_mov_b32 v{vd+1}, s67")
        k("v_cndmask_b32 v106, v106, v107, vcc")
        k(f"v_cndmask_b32 v{vd}, v108, v{vd}, vcc")
        k(f"v_cndmask_b32 v{vd+1}, v109, v{vd+1}, vcc")
        k("v_mul_u32_u24 v106, 0x480, v106")
        k(f"v_lshlrev_b32 v107, 4, v{V_Q}")
        k("v_add_u32 v106, v106, v107")
        k(f"v_add_co_u32 v{vd}, vcc, v{vd}, v106")
        k("s_nop 1")
        k(f"v_addc_co_u32 v{vd+1}, vcc, 0, v{vd+1}, vcc")
    def prefetch():
        nsub = 128 // PF_STRIDE
        k(f"s_lshl_b32 s74, s{S_M}, 2")
        k(f"s_add_u32 s74, s74, s{S_W}")
        for i in range(2):
            k(f"s_add_u32 s75, s74, {128*i}")
            k("s_cmp_ge_u32 s75, 81"); k("s_cselect_b32 s78, 1, 0")
            k("s_cmp_ge_u32 s75, 162"); k("s_addc_u32 s78, s78, 0")
            k("s_mul_i32 s79, s78, 81")
            k("s_sub_u32 s79, s75, s79")
            k("s_lshl_b32 s79, s79, 6")
            k(f"v_add_u32 v104, s79, v{V_LANE}")
            k("v_mul_u32_u24 v105, 7282, v104")
            k("v_lshrrev_b32 v105, 16, v105")
            k("v_mul_u32_u24 v106, 9, v105")
            k("v_sub_u32 v106, v104, v106")
            k("v_lshlrev_b32 v106, 7, v106")
            k("s_cmp_eq_u32 s78, 2")
            k("s_movk_i32 s79, 1152")
            k("s_cselect_b32 s79, s79, 9216")
            k(f"s_cselect_b32 s28, s{S_WD}, s68"); k(f"s_cselect_b32 s29, s{S_WD+1}, s69")
            k(f"s_mul_i32 s32, s{S_C}, 1152")
            k(f"s_mul_i32 s33, s{S_C}, {576*1152}")
            k("s_cselect_b32 s32, s33, s32")
            k("s_cmp_eq_u32 s78, 1")
            k("s_cselect_b32 s28, s70, s28"); k("s_cselect_b32 s29, s71, s29")
            k("s_cmp_ge_u32 s75, 243")
            k(f"s_cselect_b32 s30, 0, {576*9216}")
            k("s_mov_b32 s31, 0x00020000")
            k("v_mul_lo_u32 v105, v105, s79")
            k("v_add_u32 v105, v105, v106")
            for u in range(nsub):
                e.vmem(f"buffer_load_dword v{PF_DST}, v105, s[28:31], s32 offen offset:{u*PF_STRIDE} ; @dummy", ('pf', i, u))
    S_T = 76; S_TX = 77
    k(f"s_lshl_b32 s{S_T}, s{S_C}, 2")
    k(f"s_add_u32 s{S_T}, s{S_T}, s{S_W}")
    k(f"s_and_b32 s{S_TX}, s{S_C}, 3")
    k(f"s_add_u32 s{S_TX}, s{S_TX}, 32")
    haddr(110, S_TX)
    for ks in range(18):
        e.vmem(f"global_load_dwordx4 a[{4*ks}:{4*ks+3}], v[110:111], off offset:{64*ks}", ('hx', ks))
    haddr(88, S_T)
    for ks in range(18):
        e.vmem(f"global_load_dwordx4 {vr(HREG+4*ks)}, v[88:89], off offset:{64*ks}", ('h', ks))
    srd(k, SRD_A, 68, 576 * 9216)
    k(f"s_sub_u32 s{SRD_B}, s70, 1024")
    k(f"s_subb_u32 s{SRD_B+1}, s71, 0")
    k(f"s_mov_b32 s{SRD_B+2}, {576*9216+1024}")
    k(f"s_mov_b32 s{SRD_B+3}, 0x00020000")
    srd(k, SRD_WS, 72, WS_SIZE)
    for ks in range(18):
        k(f"s_mov_b32 s{S_KOFF+ks}, {ks*32*9216}")
    k(f"s_lshl_b32 s{S_M0}, s{S_W}, 11")
    k(f"s_mov_b32 s{S_L}, {hex(f2u(LOG2E))}")
    if PF:
        prefetch()
    k(f"v_lshrrev_b32 v104, 3, v{V_LANE}")
    k(f"v_and_b32 v105, 7, v{V_LANE}")
    k(f"s_lshl_b32 s74, s{S_W}, 3")
    k("v_add_u32 v106, s74, v104")
    k(f"v_bfe_u32 v107, v{V_LANE}, 4, 1")
    k(f"s_and_b32 s75, s{S_W}, 1")
    k("s_lshl_b32 s75, s75, 1")
    k("v_add_u32 v107, s75, v107")
    k("v_lshlrev_b32 v107, 1, v107")
    k("v_xor_b32 v107, v105, v107")
    k("v_lshlrev_b32 v107, 4, v107")
    k("s_movk_i32 s74, 0x2400")
    k(f"v_mul_lo_u32 v{V_DMA}, v106, s74")
    k(f"v_add_u32 v{V_DMA}, v{V_DMA}, v107")
    k(f"s_mul_i32 s74, s{S_C}, 1152")
    k(f"v_add_u32 v{V_DMA}, s74, v{V_DMA}")
    k("v_and_b32 v106, 3, v104")
    k("v_lshrrev_b32 v104, 2, v104")
    k("v_lshlrev_b32 v104, 4, v104")
    k("v_add_u32 v106, v106, v104")
    k(f"s_lshl_b32 s74, s{S_W}, 2")
    k(f"s_mul_i32 s75, s{S_C}, 576")
    k("s_add_u32 s74, s74, s75")
    k("v_add_u32 v106, s74, v106")
    k("v_mul_u32_u24 v106, 0x480, v106")
    k(f"v_add_u32 v{V_DMA2}, v106, v107")

    def dma(idx, live_idx=None):
        slot = idx % NSLOT
        if idx < 162: so = S_KOFF + idx % 18
        else: so = S_KOFF + (idx - 162) % 9
        return [
            (1, lambda: e(f"s_add_u32 m0, s{S_M0}, {slot*SLOT}")),
            (1, lambda: e.vmem(f"buffer_load_dwordx4 v{V_DMA}, s[{SRD_A}:{SRD_A+3}], s{so} offen lds", ('dma', idx, 0))),
            (1, lambda: e.vmem(f"buffer_load_dwordx4 v{V_DMA}, s[{SRD_B}:{SRD_B+3}], s{so} offen offset:1024 lds", ('dma', idx, 1))),
        ]
    def dma_now(idx):
        f = dma(idx)
        f[0][1](); k("s_nop 0"); f[1][1](); f[2][1]()
    NPRE = 3 if PF_STRIDE == 128 else 2
    for idx in range(NPRE): dma_now(idx)
    k(f"v_bfe_u32 v104, v{V_LANE}, 2, 2")
    k(f"v_and_b32 v105, 3, v{V_LANE}")
    k("v_lshrrev_b32 v106, 1, v105")
    k(f"s_lshl_b32 s74, s{S_W}, 1")
    k("v_add_u32 v106, s74, v106")
    k("v_and_b32 v105, 1, v105")
    k("v_lshlrev_b32 v105, 3, v105")
    k("v_lshrrev_b32 v107, 1, v104")
    k(f"v_and_b32 v108, 1, v{V_Q}")
    k("v_lshlrev_b32 v109, 1, v108")
    k("v_add_u32 v107, v107, v109")
    k("v_lshlrev_b32 v107, 1, v107")
    k("v_xor_b32 v107, v106, v107")
    k("v_lshlrev_b32 v107, 4, v107")
    k(f"v_lshlrev_b32 v{V_TR1}, 11, v{V_Q}")
    k("v_lshlrev_b32 v109, 7, v104")
    k(f"v_add_u32 v{V_TR1}, v{V_TR1}, v109")
    k(f"v_add_u32 v{V_TR1}, v{V_TR1}, v107")
    k(f"v_add_u32 v{V_TR1}, v{V_TR1}, v105")
    k(f"v_add_u32 v{V_TR1+1}, 0x10000, v{V_TR1}")
    k(f"v_lshlrev_b32 v{V_XR}, 4, v{V_LANE}")
    k(f"v_add_u32 v{V_XR}, {XB}, v{V_XR}")
    k(f"v_add_u32 v{V_XR+1}, 0x10000, v{V_XR}")
    k(f"s_and_b32 s74, s{S_W}, 1")
    k("s_lshl_b32 s74, s74, 3")
    k(f"s_lshr_b32 s75, s{S_W}, 1")
    k("s_lshl_b32 s75, s75, 12")
    k("s_add_u32 s74, s74, s75")
    k(f"v_add_u32 v{V_HW}, s74, v{V_XR}")
    k(f"v_lshlrev_b32 v{V_FS}, 9, v108")
    k(f"v_and_b32 v104, 1, v{V_C}")
    k("v_lshlrev_b32 v104, 8, v104")
    k(f"v_add_u32 v{V_FS}, v{V_FS}, v104")
    k(f"v_lshrrev_b32 v104, 1, v{V_C}")
    k("v_lshlrev_b32 v104, 5, v104")
    k(f"v_add_u32 v{V_FS}, v{V_FS}, v104")
    k(f"v_lshrrev_b32 v104, 1, v{V_Q}")
    k("v_lshlrev_b32 v104, 4, v104")
    k(f"v_add_u32 v{V_FS}, v{V_FS}, v104")
    k(f"s_mul_i32 s{S_FS}, s{S_C}, {FP_CHUNK}")
    k(f"s_lshl_b32 s74, s{S_W}, 16")
    k(f"s_add_u32 s{S_FS}, s{S_FS}, s74")
    k(f"s_lshl_b32 s74, s{S_M}, 11")
    k(f"s_add_u32 s{S_FS}, s{S_FS}, s74")
    k(f"s_add_u32 s{S_FS}, s{S_FS}, {FP_OFF}")
    k(f"s_and_b32 s74, s{S_M}, 1")
    k("s_lshl_b32 s74, s74, 9")
    k(f"v_lshrrev_b32 v104, 1, v{V_Q}")
    k("v_lshlrev_b32 v104, 8, v104")
    k(f"v_lshlrev_b32 v105, 4, v{V_C}")
    k("v_add_u32 v104, v104, v105")
    k("v_lshlrev_b32 v105, 3, v108")
    k("v_add_u32 v104, v104, v105")
    k(f"v_add_u32 v{V_EO}, s74, v104")

    tsf()
    S_ONE = 60; S_LO = 61; S_HI = 62
    k(f"s_mov_b32 s{S_ONE}, 0x3f803f80")
    k(f"s_mov_b32 s{S_LO}, 0x00003f80")
    k(f"s_mov_b32 s{S_HI}, 0x3f800000")
    raw = lambda i: R + 72 + i
    for ks in range(18):
        e.wait(vm=('x', ks))
        for j in range(4):
            i = 4 * ks + j
            c_in = "0" if ks == 0 else f"v{104+j}"
            k(f"v_dot2_f32_bf16 v{104+j}, v{raw(i)}, s{S_ONE}, {c_in}")
    tsf()
    for idx in range(NPRE, AHEAD): dma_now(idx)
    k("v_add_f32 v104, v104, v105"); k("v_add_f32 v106, v106, v107"); k("v_add_f32 v104, v104, v106")
    def qreduce(v, t):
        k(f"v_mov_b32 v{t}, v{v}"); k("s_nop 1")
        k(f"v_permlane32_swap_b32 v{v}, v{t}"); k(f"v_add_f32 v{v}, v{v}, v{t}")
        k(f"v_mov_b32 v{t}, v{v}"); k("s_nop 1")
        k(f"v_permlane16_swap_b32 v{v}, v{t}"); k(f"v_add_f32 v{v}, v{v}, v{t}")
    qreduce(104, 105)
    k(f"v_mul_f32 v108, {hex(f2u(-1.0/576))}, v104")
    for i in range(72):
        k(f"v_dot2_f32_bf16 v{R+2*i}, v{raw(i)}, s{S_LO}, v108")
        k(f"v_dot2_f32_bf16 v{R+2*i+1}, v{raw(i)}, s{S_HI}, v108")
    for i in range(72):
        a = 104 + 2 * (i % 2)
        if i < 2: k(f"v_pk_mul_f32 v[{a}:{a+1}], v[{R+2*i}:{R+2*i+1}], v[{R+2*i}:{R+2*i+1}]")
        else: k(f"v_pk_fma_f32 v[{a}:{a+1}], v[{R+2*i}:{R+2*i+1}], v[{R+2*i}:{R+2*i+1}], v[{a}:{a+1}]")
    k("v_add_f32 v104, v104, v105"); k("v_add_f32 v106, v106, v107"); k("v_add_f32 v104, v104, v106")
    qreduce(104, 105)
    k(f"s_mov_b32 s63, {hex(f2u(1e-5))}")
    k(f"s_mov_b32 s74, {hex(f2u(1.0/576))}")
    k("v_mov_b32 v105, s63")
    k("v_fma_f32 v104, v104, s74, v105")
    k("v_rsq_f32 v104, v104")
    k("s_nop 0")
    k(f"v_mul_f32 v108, {hex(f2u(LOG2E))}, v104")
    k(f"s_lshl_b32 s74, s{S_W}, 10")
    k(f"v_add_u32 v110, s74, v{V_XR}")
    k(f"v_add_u32 v111, 0x10000, v110")
    for ks in range(18):
        for j in range(4):
            i = 4 * ks + j
            k(f"v_pk_mul_f32 v[{R+2*i}:{R+2*i+1}], v[{R+2*i}:{R+2*i+1}], v[108:109] op_sel_hi:[1,0]")
        for j in range(4):
            i = 4 * ks + j
            k(f"v_cvt_pk_bf16_f32 v{R+i}, v{R+2*i}, v{R+2*i+1}")
        off = ks * 4096
        if ks == 12: e.wait(lg=('xw', 4))
        e.lds(f"ds_write_b128 v{110 if off < 65536 else 111}, {vr(R+4*ks)} offset:{off % 65536} ; @W x", ('xw', ks))
    tsf()
    for ks in range(18):
        if ks == 0: e.wait(vm=('hx', 17))
        a = 96 + 4 * (ks % 2)
        cin = "0" if ks < 2 else vr(a)
        k(f"v_mfma_f32_16x16x32_bf16 {vr(a)}, {vr(R+4*ks)}, a[{4*ks}:{4*ks+3}], {cin}")
    k("s_nop 7")
    for r in range(4):
        k(f"v_add_f32 v{96+r}, v{96+r}, v{100+r}")
    k(f"v_lshlrev_b32 v104, 4, v{V_LANE}")
    k(f"s_lshl_b32 s74, s{S_W}, 10")
    k(f"s_add_u32 s74, s74, {SCR}")
    k(f"v_add_u32 v105, s74, v104")
    e.lds(f"ds_write_b128 v105, {vr(96)} ; @W sc")
    k(f"v_add_u32 v104, {SCR}, v104")
    e.wait(lg='all')
    ts()
    k("s_barrier")
    for rb in range(4):
        e.lds(f"ds_read_b128 {vr(GX+4*rb)}, v104 offset:{rb*1024} ; @R sc 1", ('gx', rb))
    LOOK = 10
    def xread(n):
        va = V_XR if n < 64 else V_XR + 1
        e.lds(f"ds_read_b128 {xf(n)}, v{va} offset:{(n*1024) % 65536} ; @R x 18", ('xr', n))
    for n in range(LOOK): xread(n)
    e.wait(vm=('h', 17))
    for n in range(72):
        ks, rb = n // 4, n % 4
        e.wait(lg=('xr', n))
        cin = "0" if ks == 0 else vr(GREG + 4 * rb)
        k(f"v_mfma_f32_16x16x32_bf16 {vr(GREG+4*rb)}, {xf(n)}, {vr(HREG+4*ks)}, {cin}")
        if n + LOOK < 72: xread(n + LOOK)
    def trreads(idx):
        slot = idx % NSLOT
        b = idx % 2 if idx < 162 else (idx - 162 + 0) % 2
        b = idx % 2
        va = V_TR1 + (1 if slot == 8 else 0)
        base = (slot * SLOT) % 65536
        offs = [0, 512, 1024, 1536]
        out = []
        for n, o in enumerate(offs):
            d = AF + 8 * b + 2 * n
            out.append((1, (lambda d=d, o=o, n=n: e.lds(f"ds_read_b64_tr_b16 v[{d}:{d+1}], v{va} offset:{base+o}", ('tr', idx, n)))))
        return out
    ts()
    e.wait(vm=('dma', NB, 1))
    k("s_barrier")
    ts(); cy()
    for c_, f in trreads(0): f()

    def fold(G, sT, tile_is_extra):
        L = []
        V = lambda s: L.append((1, lambda s=s: e(s)))
        sg = FT
        U = FT + 4; Vv = FT + 8; E = FT + 12; O = FT + 16; Zr = FT + 20; t = FT + 1
        P = FT + 24
        V(f"s_lshl_b32 s74, s{sT}, 4")
        V(f"v_add_u32 v{t}, s74, v{V_C}")
        V(f"s_movk_i32 s75, 288")
        V(f"v_cmp_lt_u32 vcc, s75, v{t}")
        V(f"v_mov_b32 v{sg}, 1.0")
        V(f"v_lshlrev_b32 v{t+1}, 2, v{t}")
        V(f"v_cndmask_b32 v{sg}, v{sg}, -1.0, vcc")
        L.pop()
        V(f"v_mov_b32 v{t+2}, -1.0")
        V(f"v_cndmask_b32 v{sg}, v{sg}, v{t+2}, vcc")
        for r in range(4):
            V(f"v_fma_f32 v{U+r}, v{sg}, v{G+12+r}, v{G+r}")
            V(f"v_fma_f32 v{Vv+r}, v{sg}, v{G+4+r}, v{G+8+r}")
        for r in range(4):
            V(f"v_add_f32 v{E+r}, v{U+r}, v{Vv+r}")
            V(f"v_sub_f32 v{O+r}, v{U+r}, v{Vv+r}")
        V(f"s_cmp_eq_u32 s{S_M}, 0\ns_cselect_b32 s74, 16, 0")
        V(f"v_cmp_gt_u32 vcc, s74, v{V_LANE}")
        V(f"v_add_f32 v{U}, v{G}, v{G+4}")
        V(f"v_sub_f32 v{U+1}, v{G}, v{G+4}")
        V(f"v_fma_f32 v{Zr}, v{sg}, v{G+12}, v{G+8}")
        V(f"v_cndmask_b32 v{E}, v{E}, v{U}, vcc")
        V(f"v_cndmask_b32 v{O}, v{O}, v{U+1}, vcc")
        V(f"v_mov_b32 v{t+2}, {hex(OOB)}")
        V(f"v_cndmask_b32 v{t+1}, v{t+2}, v{t+1}, vcc")
        V(f"v_cvt_pk_bf16_f32 v{P}, v{E}, v{E+1}")
        V(f"v_cvt_pk_bf16_f32 v{P+1}, v{E+2}, v{E+3}")
        V(f"v_cvt_pk_bf16_f32 v{P+2}, v{O}, v{O+1}")
        V(f"v_cvt_pk_bf16_f32 v{P+3}, v{O+2}, v{O+3}")
        V(f"s_lshl_b32 s74, s{sT}, 14")
        V(f"s_lshr_b32 s75, s{S_M}, 1")
        V(f"s_lshl_b32 s75, s75, 10")
        V(f"s_add_u32 s74, s74, s75")
        if tile_is_extra:
            V(f"s_lshr_b32 s75, s{S_C}, 2")
            V(f"s_or_b32 s75, s75, s{S_W}")
            V(f"s_cmp_eq_u32 s75, 0\ns_cselect_b32 s75, 0, {hex(OOB)}")
            V(f"v_or_b32 v{t+3}, s75, v{V_EO}")
            V(f"v_or_b32 v{t+1}, s75, v{t+1}")
            veo = t + 3
        else:
            veo = V_EO
        V(f"s_add_u32 s75, s74, {EO_PAR}")
        L.append((1, lambda: e.vmem(f"buffer_store_dwordx2 v[{P}:{P+1}], v{veo}, s[{SRD_WS}:{SRD_WS+3}], s74 offen sc1")))
        L.append((1, lambda: e.vmem(f"buffer_store_dwordx2 v[{P+2}:{P+3}], v{veo}, s[{SRD_WS}:{SRD_WS+3}], s75 offen sc1")))
        V(f"s_mov_b32 s74, {Z_OFF}")
        L.append((1, lambda: e.vmem(f"buffer_store_dword v{Zr}, v{t+1}, s[{SRD_WS}:{SRD_WS+3}], s74 offen sc1")))
        return L

    def epi1(G):
        b = G % 2
        L = []
        V = lambda c, s: L.append((c, lambda s=s: e(s)))
        for rb in range(4):
            g = ACC + 32 * b + 4 * rb; u = g + 16
            t = ET + 12 * (rb % 2); p = t + 4; h = t + 8
            for r in range(4): V(2, f"v_exp_f32 v{t+r}, -v{g+r}")
            for r in range(4): V(1, f"v_mul_f32 v{p+r}, v{g+r}, v{u+r}")
            for r in range(4): V(1, f"v_fma_f32 v{t+r}, v{t+r}, s{S_L}, s{S_L}")
            for r in range(4): V(2, f"v_rcp_f32 v{t+r}, v{t+r}")
            for r in range(4): V(1, f"v_mul_f32 v{p+r}, v{p+r}, v{t+r}")
            V(1, f"v_cvt_pk_bf16_f32 v{h}, v{p}, v{p+1}")
            V(1, f"v_cvt_pk_bf16_f32 v{h+1}, v{p+2}, v{p+3}")
            L.append((1, lambda h=h, rb=rb: e.lds(f"ds_write_b64 v{V_HW}, v[{h}:{h+1}] offset:{rb*1024} ; @W h {rb}")))
        V(1, f"v_add_u32 v{V_HW}, {2*4096}, v{V_HW}")
        return L

    def epi2(CG):
        b = CG % 2
        L = []
        V = lambda s: L.append((1, lambda s=s: e(s)))
        for P in range(2):
            a0 = ACC2 + 16 * b + 8 * P; a1 = a0 + 4
            t = ET + 4 * P
            V(f"v_cvt_pk_bf16_f32 v{t}, v{a0}, v{a0+1}")
            V(f"v_cvt_pk_bf16_f32 v{t+1}, v{a0+2}, v{a0+3}")
            V(f"v_cvt_pk_bf16_f32 v{t+2}, v{a1}, v{a1+1}")
            V(f"v_cvt_pk_bf16_f32 v{t+3}, v{a1+2}, v{a1+3}")
        for P in range(2):
            t = ET + 4 * P
            V(f"v_permlane16_swap_b32 v{t}, v{t+2}")
            V(f"v_permlane16_swap_b32 v{t+1}, v{t+3}")
        for P in range(2):
            t = ET + 4 * P
            L.append((1, lambda t=t, P=P: e.vmem(f"buffer_store_dwordx4 {vr(t)}, v{V_FS}, s[{SRD_WS}:{SRD_WS+3}], s{S_FS} offen offset:{1024*P} sc1")))
        V(f"s_add_u32 s{S_FS}, s{S_FS}, {4*65536}")
        return L

    def step(j, mfmas, extra, pre_lg=None):
        if j % NB == 0:
            e.wait(vm=('dma', j + NB, 1), lg='all'); e("s_barrier")
        else:
            e.wait(lg=pre_lg or ('tr', j, 3))
        fixed = trreads(j + 1) + dma(j + AHEAD)
        fill = fixed[:4]
        rest = fixed[4:]
        ex = list(extra)
        seq = fill + [rest[0]]
        if ex: seq.append(ex.pop(0))
        seq.append(rest[1])
        if ex: seq.append(ex.pop(0))
        seq.append(rest[2])
        seq += ex
        if len(seq) > 5 and seq[4] is rest[0] and seq[5] is rest[1]:
            seq.insert(5, (0, lambda: e("s_nop 0")))
        tot = sum(c for c, _ in seq)
        acc = 0; pos = 0
        for i, mtext in enumerate(mfmas):
            e(mtext)
            target = max(2 * (i + 1), tot * (i + 1) / len(mfmas)) if tot <= 16 else tot * (i + 1) / len(mfmas)
            while pos < len(seq) and acc + seq[pos][0] <= target + 0.01:
                seq[pos][1](); acc += seq[pos][0]; pos += 1
        while pos < len(seq):
            seq[pos][1](); pos += 1

    def split(L, nsteps, first=0):
        tot = sum(c for c, _ in L); out = [[] for _ in range(nsteps)]
        n = nsteps - first; acc = 0; s = first
        for it in L:
            while s < nsteps - 1 and acc >= tot * (s - first + 1) / n - 0.01: s += 1
            out[s].append(it); acc += it[0]
        return out

    def group1(G):
        b = G % 2
        if G == 0:
            L = fold(GREG, S_T, False) + fold(GX, S_TX, True)
            ch = split(L, 12, 0) + [[] for _ in range(6)]
        else:
            ch = split(epi1(G - 1), 18, 1)
        for ks in range(18):
            j = 18 * G + ks
            ex = list(ch[ks])
            if ks == 18 - AHEAD:
                if G % 2 == 0 and G > 0:
                    sw = k.label("sw")
                    def swblock(sw=sw):
                        e(f"s_cmp_lg_u32 s{S_LOOP}, 1")
                        e(f"v_add_u32 v{V_DMA}, 128, v{V_DMA}")
                        e(f"s_cbranch_scc1 {sw} ; @taken 1,1,1,0")
                        e(f"v_mov_b32 v{V_DMA}, v{V_DMA2}")
                        e(f"s_mov_b32 s{SRD_A}, s{S_WD}")
                        e(f"s_mov_b32 s{SRD_A+1}, s{S_WD+1}")
                        e(f"s_mov_b32 s{SRD_A+2}, {4608*1152}")
                        e(f"s_add_u32 s{SRD_B}, s{S_WD}, {32*1152-1024}")
                        e(f"s_addc_u32 s{SRD_B+1}, s{S_WD+1}, 0")
                        e(f"s_mov_b32 s{SRD_B+2}, {4608*1152}")
                        for jj in range(9):
                            e(f"s_mov_b32 s{S_KOFF+jj}, {jj*64*1152}")
                        e(f"{sw}:")
                    ex = [(2, swblock)] + ex
                    pre = True
                else:
                    ex = [(1, lambda: e(f"v_add_u32 v{V_DMA}, 128, v{V_DMA}"))] + ex
                first = ex.pop(0)
                first[1]()
            mf = []
            for rb in range(4):
                for gu in range(2):
                    a = ACC + 32 * b + 16 * gu + 4 * rb
                    A = AF + 8 * (j % 2) + 4 * gu
                    cin = "0" if ks == 0 else vr(a)
                    mf.append(f"v_mfma_f32_16x16x32_bf16 {vr(a)}, {vr(A)}, {xf(4*ks+rb)}, {cin}")
            step(j, mf, ex)

    def group2(CG):
        b = CG % 2
        j0 = 162 + 9 * CG
        hq = None
        if CG == 0:
            ch = split(epi1(8), 6, 0) + [[], [], []]
            def hread(n):
                va = V_XR if n < 64 else V_XR + 1
                return (1, lambda: e.lds(f"ds_read_b128 {xf(n)}, v{va} offset:{(n*1024) % 65536} ; @R h {n//4}", ('hr', n)))
            for n in range(8): hread(n)[1]()
        else:
            ch = split(epi2(CG - 1), 5, 1) + [[], [], [], []]
        for s in range(9):
            j = j0 + s
            ex = list(ch[s])
            pre_lg = None
            if CG == 0:
                if s < 8:
                    ex = [hread(n) for n in range(8 * (s + 1), 8 * (s + 2))] + ex
            if s == 9 - AHEAD:
                e(f"v_add_u32 v{V_DMA}, 128, v{V_DMA}")
                if CG % 2 == 0 and CG > 0:
                    e(f"s_cmp_eq_u32 s{S_LOOP}, 1")
                    e(f"s_cselect_b32 s{SRD_A+2}, 0, s{SRD_A+2}")
                    e(f"s_cselect_b32 s{SRD_B+2}, 0, s{SRD_B+2}")
            mf = []
            for hf in range(2):
                for rb in range(4):
                    a = ACC2 + 16 * b + 4 * rb
                    A = AF + 8 * (j % 2) + 4 * hf
                    cin = "0" if (s == 0 and hf == 0) else vr(a)
                    mf.append(f"v_mfma_f32_16x16x32_bf16 {vr(a)}, {vr(A)}, {xf(4*(2*s+hf)+rb)}, {cin}")
            if CG == 0:
                pre_lg = ('hr', 8 * s + 7)
            step(j, mf, ex, pre_lg=pre_lg)

    def capture(fn, *a):
        e.buf = []
        fn(*a)
        b = e.buf; e.buf = None
        return b
    import re
    def norm(lines):
        return [re.sub(r'L_\w+', 'LBL', x) for x in lines]

    for x in capture(group1, 0): k(x)
    bodies = [capture(group1, 1 + 2 * i) + capture(group1, 2 + 2 * i) for i in range(4)]
    for i in range(1, 4):
        assert norm(bodies[i]) == norm(bodies[0]), f"phase-1 loop body {i} differs:\n" + "\n".join(
            f"{a} | {b}" for a, b in zip(norm(bodies[0]), norm(bodies[i])) if a != b)
    L1 = k.label("p1")
    k(f"s_mov_b32 s{S_LOOP}, 4")
    k(f"{L1}:")
    for x in bodies[0]: k(x)
    k(f"s_sub_u32 s{S_LOOP}, s{S_LOOP}, 1")
    k(f"s_cmp_lg_u32 s{S_LOOP}, 0")
    k(f"s_cbranch_scc1 {L1} ; @loop 4")
    ts(); cy()
    for x in capture(group2, 0): k(x)
    bodies = [capture(group2, 1 + 2 * i) + capture(group2, 2 + 2 * i) for i in range(4)]
    for i in range(1, 4):
        assert norm(bodies[i]) == norm(bodies[0]), f"phase-2 loop body {i} differs:\n" + "\n".join(
            f"{a} | {b}" for a, b in zip(norm(bodies[0]), norm(bodies[i])) if a != b)
    L2 = k.label("p2")
    k(f"s_mov_b32 s{S_LOOP}, 4")
    k(f"{L2}:")
    for x in bodies[0]: k(x)
    k(f"s_sub_u32 s{S_LOOP}, s{S_LOOP}, 1")
    k(f"s_cmp_lg_u32 s{S_LOOP}, 0")
    k(f"s_cbranch_scc1 {L2} ; @loop 4")
    ts(); cy()
    k("s_nop 7")
    for c_, f in epi2(8):
        f()
        k("s_nop 1")
    k("s_waitcnt vmcnt(0)")
    ts()
    if dbg:
        dbg_store(k, tsn[0], SRD_WS, dbg, cyc=[26, 28, 30])
    k(f"{END}:")
    k("s_endpgm")
    return k


def dbg_store(k, n, srdws, off, cyc=()):
    k("s_waitcnt lgkmcnt(0)")
    k("v_lshrrev_b32 v1, 6, v0")
    k("s_lshl_b32 s78, s2, 2")
    k("v_add_u32 v1, s78, v1")
    k("v_lshlrev_b32 v1, 6, v1")
    k(f"s_mov_b32 s78, {off}")
    for i in range(n):
        k(f"v_mov_b32 v2, s{80+2*i}")
        k(f"buffer_store_dword v2, v1, s[{srdws}:{srdws+3}], s78 offen offset:{4*i}")
    for i, c in enumerate(cyc):
        k(f"v_mov_b32 v2, s{c}")
        k(f"buffer_store_dword v2, v1, s[{srdws}:{srdws+3}], s78 offen offset:{4*(13+i)}")
    k("s_waitcnt vmcnt(0)")


import struct
def f2u(x):
    return struct.unpack("<I", struct.pack("<f", x))[0]


if __name__ == "__main__":
    k = gen_k1()
    txt = build([k])
    open("k1.s", "w").write(txt)
    import sim
    sim.check(txt, k.name)
```

```python
import sys
sys.path.insert(0, "gen")
from asmlib import *
from k1 import dbg_store, Em, vr, f2u, EO_OFF, EO_PAR, Z_OFF, FP_OFF, FP_CHUNK, WS_SIZE, OOB, LOG2E

ROWB = 272
ARR = 32 * ROWB
LDS2 = 4 * ARR

S_P = 3; S_I = 4; S_J = 5; S_W = 6
SRD_S = 8; SRD_WS = 12; SRD_X = 16; SRD_O = 20
S_EO0 = 24; S_EO1 = 25; S_Z = 26; S_SGN = 27
S_FC = 28
S_LO = 36; S_HI = 37; S_L2 = 38
V_LANE = 1; V_C = 2; V_Q = 3
V_S = 4
V_EO = 6
V_Z = 10
V_F = 14
ACC = 16
ZR = 48
FR = 64
XR = 160
PQ = 172
Y = 220
FS = 228
T = 236
V_FN = 244
V_X = 247
V_LW = 248
V_LR = 249
V_SG = 250


def gen_k2(name="fnet_k2_kernel", dbg=None):
    k = Kernel(name, (198, 1, 1), (256, 1, 1), LDS2, 512, accum=256)
    e = Em(k)
    END = k.label("end")
    k("s_cmp_ge_u32 s2, 198")
    k(f"s_cbranch_scc1 {END} ; @taken 0")
    tsn = [0]
    def ts():
        if dbg:
            k(f"s_memrealtime s[{80+2*tsn[0]}:{81+2*tsn[0]}]"); tsn[0] += 1
    ts()
    k("s_load_dwordx2 s[40:41], s[0:1], 0")
    k("s_load_dwordx4 s[44:47], s[0:1], 8")
    k("s_load_dwordx2 s[42:43], s[0:1], 72")
    k("s_load_dwordx2 s[48:49], s[0:1], 88")
    k("s_and_b32 s50, s2, 7")
    k("s_lshr_b32 s51, s2, 3")
    k("s_mul_i32 s52, s51, 43")
    k("s_lshr_b32 s52, s52, 8")
    k("s_mul_i32 s53, s52, 6")
    k(f"s_sub_u32 s{S_J}, s51, s53")
    k(f"s_lshr_b32 s{S_P}, s50, 2")
    k("s_and_b32 s50, s50, 3")
    k("s_lshl_b32 s50, s50, 2")
    k(f"s_add_u32 s{S_I}, s50, s52")
    k("s_sub_u32 s50, s2, 192")
    k("s_cmp_ge_u32 s2, 192")
    k(f"s_cselect_b32 s{S_J}, s50, s{S_J}")
    k(f"s_cselect_b32 s{S_P}, 0, s{S_P}")
    k(f"s_cselect_b32 s{S_I}, 16, s{S_I}")
    k(f"v_and_b32 v{V_LANE}, 63, v0")
    k("v_lshrrev_b32 v15, 6, v0")
    k(f"v_and_b32 v{V_C}, 15, v{V_LANE}")
    k(f"v_readfirstlane_b32 s{S_W}, v15")
    k(f"v_lshrrev_b32 v{V_Q}, 4, v{V_LANE}")
    k("s_nop 1")
    k(f"s_and_b32 s54, s{S_W}, 1")
    k(f"s_lshr_b32 s55, s{S_W}, 1")
    k(f"s_lshl_b32 s56, s{S_I}, 6")
    k(f"s_add_u32 s56, s56, s{S_P}")
    k(f"v_lshlrev_b32 v15, 1, v{V_C}")
    k("v_add_u32 v15, s56, v15")
    k("v_lshlrev_b32 v15, 12, v15")
    k(f"v_lshlrev_b32 v{V_S}, 4, v{V_Q}")
    k(f"v_add_u32 v{V_S}, v{V_S}, v15")
    k("s_lshl_b32 s57, s55, 9")
    k(f"v_add_u32 v{V_S}, s57, v{V_S}")
    k(f"v_add_u32 v{V_S+1}, {32*4096}, v{V_S}")
    k(f"v_lshlrev_b32 v15, 4, v{V_LANE}")
    k(f"v_add_u32 v{V_EO+1}, 16384, v15")
    k(f"v_add_u32 v{V_EO+2}, 32768, v15")
    k(f"s_mov_b32 s58, {hex(OOB)}")
    k("v_mov_b32 v251, s58")
    k(f"v_cmp_eq_u32 vcc, 0, v{V_C}")
    k(f"v_add_u32 v{V_EO+3}, 49152, v15")
    k(f"v_cndmask_b32 v{V_EO+3}, v251, v{V_EO+3}, vcc")
    k(f"s_cmp_eq_u32 s{S_J}, 0")
    k("s_cselect_b32 s59, s54, 0")
    k(f"s_cmp_eq_u32 s{S_J}, 5")
    k("s_cselect_b32 s60, s54, 0")
    k("s_cmp_eq_u32 s59, 1")
    k(f"s_cselect_b32 s59, {hex(OOB)}, 0")
    k("s_cmp_eq_u32 s60, 1")
    k(f"s_cselect_b32 s60, {hex(OOB)}, 0")
    k("v_mov_b32 v252, s59")
    k(f"v_cndmask_b32 v252, 0, v252, vcc")
    k(f"v_or_b32 v{V_EO}, v252, v15")
    k(f"v_or_b32 v{V_EO+3}, s60, v{V_EO+3}")
    k(f"s_mul_i32 s61, s{S_P}, {EO_PAR}")
    k(f"s_mul_i32 s62, s{S_J}, {3*16384}")
    k("s_add_u32 s61, s61, s62")
    k(f"s_mul_i32 s62, s54, {18*16384}")
    k("s_add_u32 s61, s61, s62")
    k("s_lshl_b32 s62, s55, 13")
    k(f"s_add_u32 s{S_EO0}, s61, s62")
    k(f"s_add_u32 s{S_EO1}, s{S_EO0}, 4096")
    k(f"s_xor_b32 s61, s54, s{S_P}")
    k("s_or_b32 s61, s61, s55")
    k("s_cmp_eq_u32 s61, 0")
    k(f"s_cselect_b32 s61, 0, {hex(OOB)}")
    k(f"s_mul_i32 s62, s54, {288*4}")
    k(f"s_mul_i32 s63, s{S_J}, {48*4}")
    k("s_add_u32 s62, s62, s63")
    k(f"s_add_u32 s{S_Z}, s62, {Z_OFF}")
    k(f"v_lshlrev_b32 v{V_Z}, 4, v{V_Q}")
    k(f"v_or_b32 v{V_Z}, s61, v{V_Z}")
    k(f"v_or_b32 v{V_Z+1}, s60, v{V_Z}")
    k(f"v_and_b32 v15, 1, v{V_C}")
    k(f"v_xor_b32 v15, s{S_P}, v15")
    k("v_lshlrev_b32 v15, 31, v15")
    k(f"v_or_b32 v{V_SG}, 0x3f800000, v15")
    k("s_waitcnt lgkmcnt(0)")
    k("s_cmp_eq_u32 s54, 0")
    k(f"s_cselect_b32 s{SRD_S}, s44, s46")
    k(f"s_cselect_b32 s{SRD_S+1}, s45, s47")
    k(f"s_mov_b32 s{SRD_S+2}, {2048*4096}")
    k(f"s_mov_b32 s{SRD_S+3}, 0x00020000")
    srd(k, SRD_WS, 48, WS_SIZE)
    srd(k, SRD_X, 40, 2048 * 1152)
    srd(k, SRD_O, 42, 2048 * 1152)
    WSR = f"s[{SRD_WS}:{SRD_WS+3}]"
    for n in range(4):
        vz = V_Z + (1 if n == 3 else 0)
        e.vmem(f"buffer_load_dwordx4 {vr(ZR+4*n)}, v{vz}, {WSR}, s{S_Z} offen offset:{64*n}", ('z', n))
    def sfrag(kl, tt): return f"a[{128+8*kl+4*tt}:{128+8*kl+4*tt+3}]"
    def efrag(kl, n): return f"a[{16*kl+4*n}:{16*kl+4*n+3}]"
    for kl in range(8):
        for tt in range(2):
            e.vmem(f"buffer_load_dwordx4 {sfrag(kl,tt)}, v{V_S+tt}, s[{SRD_S}:{SRD_S+3}], 0 offen offset:{64*kl}", ('s', kl, tt))
        for n in range(4):
            so = S_EO0 if kl < 4 else S_EO1
            e.vmem(f"buffer_load_dwordx4 {efrag(kl,n)}, v{V_EO+n}, {WSR}, s{so} offen offset:{1024*(kl%4)}", ('e', kl, n))
    k(f"v_and_b32 v15, 0xfe, v{V_LANE}")
    k("v_add_u32 v15, s56, v15")
    k(f"v_and_b32 v251, 1, v{V_LANE}")
    k("s_movk_i32 s61, 512")
    k("v_sub_u32 v252, 1024, v15")
    k("v_cmp_gt_u32 vcc, s61, v15")
    k("v_cndmask_b32 v252, v252, v15, vcc")
    k("s_cmp_eq_u32 s55, 0")
    k("s_cselect_b32 s62, 0, 3")
    k("s_cselect_b32 s63, 1, 2")
    k("s_cselect_b32 s64, 2, 3")
    k("v_mov_b32 v253, s63")
    k("v_mov_b32 v254, s62")
    k("v_cndmask_b32 v253, v253, v254, vcc")
    k("v_cmp_eq_u32 vcc, s61, v15")
    k("v_mov_b32 v254, s64")
    k("v_cndmask_b32 v253, v253, v254, vcc")
    k("v_cndmask_b32 v252, v252, 0, vcc")
    k.lines.pop()
    k("v_mov_b32 v254, 0")
    k("v_cndmask_b32 v252, v252, v254, vcc")
    k("v_lshrrev_b32 v254, 4, v252")
    k("v_lshlrev_b32 v254, 11, v254")
    k("v_lshlrev_b32 v253, 9, v253")
    k("v_add_u32 v254, v254, v253")
    k("v_and_b32 v253, 1, v252")
    k("v_lshlrev_b32 v253, 8, v253")
    k("v_add_u32 v254, v254, v253")
    k("v_bfe_u32 v253, v252, 1, 3")
    k("v_lshlrev_b32 v253, 5, v253")
    k("v_add_u32 v254, v254, v253")
    k("v_lshlrev_b32 v251, 4, v251")
    k("v_add_u32 v254, v254, v251")
    k("v_sub_u32 v253, 0x800, v15")
    k("s_cmp_eq_u32 s55, 0")
    k("s_cselect_b64 vcc, -1, 0")
    k("s_cselect_b32 s62, 0, 1")
    k("s_movk_i32 s64, 1023")
    k("s_cselect_b32 s63, 1025, s64")
    k("v_cndmask_b32 v253, v253, v15, vcc")
    k("v_subrev_u32 v15, s62, v15")
    k("v_cmp_gt_u32 vcc, s63, v15")
    k("v_mul_u32_u24 v253, 0x480, v253")
    k("v_add_u32 v253, v253, v251")
    k(f"s_mul_i32 s62, s{S_J}, 3")
    k("s_sub_u32 s63, 33, s62")
    k("s_cmp_eq_u32 s54, 0")
    k("s_cselect_b32 s62, s62, s63")
    k("s_lshl_b32 s63, s62, 5")
    k("v_add_u32 v253, s63, v253")
    k("v_mov_b32 v252, s58")
    k(f"v_cndmask_b32 v{V_X}, v252, v253, vcc")
    k("s_lshl_b32 s63, s62, 16")
    k("v_add_u32 v254, s63, v254")
    k(f"v_cndmask_b32 v{V_FN}, v252, v254, vcc")
    k(f"v_add_u32 v{V_FN+1}, 0x10000, v{V_FN}")
    k(f"v_add_u32 v{V_FN+2}, 0x20000, v{V_FN}")
    for c in range(8):
        k(f"s_mov_b32 s{S_FC+c}, {FP_OFF + c*FP_CHUNK}")
    def fload(n, c):
        e.vmem(f"buffer_load_dwordx4 {vr(FR+32*n+4*c)}, v{V_FN+n}, {WSR}, s{S_FC+c} offen", ('f', n, c))
    def xload(n):
        e.vmem(f"buffer_load_dwordx4 {vr(XR+4*n)}, v{V_X}, s[{SRD_X}:{SRD_X+3}], 0 offen offset:{32*n}", ('x', n))
    later = []
    for n in range(3):
        later.append(lambda n=n: xload(n))
        for c in range(8): later.append(lambda n=n, c=c: fload(n, c))
    for _ in range(11): later.pop(0)()
    k(f"v_mul_u32_u24 v{V_LW}, {ROWB}, v{V_C}")
    k(f"v_lshlrev_b32 v15, 4, v{V_Q}")
    k(f"v_add_u32 v{V_LW}, v{V_LW}, v15")
    k(f"s_mul_i32 s63, s{S_W}, {ARR}")
    k(f"v_add_u32 v{V_LW}, s63, v{V_LW}")
    k(f"v_lshrrev_b32 v15, 1, v{V_LANE}")
    k(f"v_mul_u32_u24 v{V_LR}, {ROWB}, v15")
    k(f"v_lshlrev_b32 v15, 1, v251")
    k("v_sub_u32 v253, 32, v15")
    k("s_cmp_eq_u32 s54, 0")
    k("s_cselect_b64 vcc, -1, 0")
    k("v_cndmask_b32 v15, v253, v15, vcc")
    k(f"v_add_u32 v{V_LR}, v{V_LR}, v15")
    k("s_xor_b32 s62, s54, s55")
    k("s_cmp_eq_u32 s62, 0")
    k(f"s_cselect_b32 s{S_SGN}, -1.0, 1.0")
    k(f"s_mov_b32 s{S_LO}, 0x00003f80")
    k(f"s_mov_b32 s{S_HI}, 0x3f800000")
    k(f"s_mov_b32 s{S_L2}, {hex(f2u(LOG2E*LOG2E))}")
    ts()
    e.wait(vm=('z', 3))
    k(f"v_cmp_gt_u32 vcc, 16, v{V_LANE}")
    k("v_mov_b32 v252, s59")
    k("v_cndmask_b32 v252, 0, v252, vcc")
    k("v_cmp_eq_u32 vcc, 0, v252")
    k(f"v_cndmask_b32 v{ZR}, 0, v{ZR}, vcc")
    for tt in range(2):
        for n in range(4):
            for r in range(4):
                k(f"v_mul_f32 v{ACC+16*tt+4*n+r}, v{V_SG}, v{ZR+4*n+r}")
    for kl in range(8):
        e.wait(vm=('e', kl, 3))
        for n in range(4):
            for tt in range(2):
                a = ACC + 16 * tt + 4 * n
                k(f"v_mfma_f32_16x16x32_bf16 {vr(a)}, {efrag(kl,n)}, {sfrag(kl,tt)}, {vr(a)}")
        for _ in range(6 if kl else 10):
            if later: later.pop(0)()
    assert not later
    ts()
    k("s_nop 7")
    for tt in range(2):
        for n in range(4):
            e.lds(f"ds_write_b128 v{V_LW}, {vr(ACC+16*tt+4*n)} offset:{tt*16*ROWB + 64*n} ; @W pq")
    e.wait(lg='all')
    k("s_barrier")
    ts()
    BWD = k.label("bwd"); DONE = k.label("done")
    k("s_cmp_eq_u32 s54, 1")
    k(f"s_cbranch_scc1 {BWD}")
    st = (list(e.vm), list(e.lg))
    for bwd in range(2):
        e.vm, e.lg = list(st[0]), list(st[1])
        if bwd: k(f"{BWD}:")
        for n in range(3):
            nq = 3 if bwd else 2
            base = (2 - n) * 64 if bwd else n * 64
            for wv in (0, 2, 1, 3):
                for qd in range(nq):
                    e.lds(f"ds_read_b128 {vr(PQ+12*wv+4*qd)}, v{V_LR} offset:{wv*ARR + base + 16*qd} ; @R pq 8", ('pq', n, wv, qd))
            for c in range(8):
                e.wait(vm=('f', n, c))
                for u in range(8):
                    sel = S_HI if u & 1 else S_LO
                    cin = "0" if c == 0 else f"v{FS+u}"
                    k(f"v_dot2_f32_bf16 v{FS+u}, v{FR+32*n+4*c+u//2}, s{sel}, {cin}")
            idx = (lambda u: 8 - u) if bwd else (lambda u: u)
            e.wait(lg=('pq', n, 2, nq - 1))
            for u in range(8):
                k(f"v_add_f32 v{Y+u}, v{PQ+idx(u)}, v{PQ+24+idx(u)}")
            e.wait(lg=('pq', n, 3, nq - 1))
            for u in range(8):
                k(f"v_add_f32 v{T+u}, v{PQ+12+idx(u)}, v{PQ+36+idx(u)}")
            for u in range(8):
                k(f"v_fma_f32 v{Y+u}, v{T+u}, s{S_SGN}, v{Y+u}")
            for u in range(8):
                k(f"v_exp_f32 v{T+u}, -v{FS+u}")
            for u in range(0, 8, 2):
                k(f"v_pk_mul_f32 v[{Y+u}:{Y+u+1}], v[{Y+u}:{Y+u+1}], v[{FS+u}:{FS+u+1}]")
            for u in range(8):
                k(f"v_fma_f32 v{T+u}, v{T+u}, s{S_L2}, s{S_L2}")
            for u in range(8):
                k(f"v_rcp_f32 v{T+u}, v{T+u}")
            k("s_nop 0")
            for u in range(0, 8, 2):
                k(f"v_pk_mul_f32 v[{Y+u}:{Y+u+1}], v[{Y+u}:{Y+u+1}], v[{T+u}:{T+u+1}]")
            e.wait(vm=('x', n))
            for u in range(8):
                sel = S_HI if u & 1 else S_LO
                k(f"v_dot2_f32_bf16 v{Y+u}, v{XR+4*n+u//2}, s{sel}, v{Y+u}")
            for u in range(0, 8, 2):
                k(f"v_cvt_pk_bf16_f32 v{XR+4*n+u//2}, v{Y+u}, v{Y+u+1}")
            e.vmem(f"buffer_store_dwordx4 {vr(XR+4*n)}, v{V_X}, s[{SRD_O}:{SRD_O+3}], 0 offen offset:{32*n}", ('o', n))
        if not bwd:
            k(f"s_branch {DONE}")
    k(f"{DONE}:")
    if dbg:
        k("s_waitcnt vmcnt(0)")
        ts()
        dbg_store(k, tsn[0], SRD_WS, dbg)
    k(f"{END}:")
    k("s_endpgm")
    return k


if __name__ == "__main__":
    import sim
    from k1 import gen_k1
    dbg = len(sys.argv) > 2 and sys.argv[2] == "dbg"
    k1 = gen_k1(dbg=(64 << 20) if dbg else None, fine=len(sys.argv) > 3); k2 = gen_k2(dbg=(65 << 20) if dbg else None)
    txt = build([k1, k2])
    txt = sim.autofix(txt, k2.name, [(), ("bwd",)])
    out = sys.argv[1] if len(sys.argv) > 1 else "main.s"
    open(out, "w").write(txt)
    sim.check(txt, k1.name)
    sim.check(txt, k2.name, ())
    sim.check(txt, k2.name, ("bwd",))
```

```python
import sys
sys.path.insert(0, "gen")
from asmlib import *

KN = "recurrent_scan__spectral_fnet__swiglu_ffn__prompt"
LOG2E = 1.4426950408889634

EO_OFF = 0
EO_PAR = 36 * 16 * 1024
Z_OFF = 2 * EO_PAR
FP_OFF = 2 * 1024 * 1024
FP_CHUNK = 36 * 32 * 2048
WS_SIZE = 268435456

NSLOT = 9; SLOT = 8192
XB = NSLOT * SLOT
SCR = XB + 72 * 1024
HX8 = SCR + 4096
LDS1 = HX8 + 2048
HOFF = 9
import os
NB = int(os.environ.get("NB", "3"))
AHEAD = NSLOT + 1 - NB
OOB = 0x7FFFFFF0
import os
PF = int(os.environ.get("PF", "1"))
PF_STRIDE = int(os.environ.get("PF_STRIDE", "128"))
PF_DST = 4


class Em:
    def __init__(self, k):
        self.k = k; self.vm = []; self.lg = []; self.buf = None
    def __call__(self, s):
        if self.buf is None: self.k(s)
        else: self.buf.append(s)
    def vmem(self, s, tag=None):
        self(s); self.vm.append(tag)
    def lds(self, s, tag=None):
        self(s); self.lg.append(tag)
    def cnt(self, q, tag):
        idx = max(i for i, t in enumerate(q) if t == tag)
        return len(q) - 1 - idx
    def wait(self, vm=None, lg=None):
        parts = []
        if vm is not None:
            n = 0 if vm == 'all' else self.cnt(self.vm, vm)
            parts.append(f"vmcnt({min(n, 63)})")
        if lg is not None:
            n = 0 if lg == 'all' else self.cnt(self.lg, lg)
            parts.append(f"lgkmcnt({min(n, 15)})")
        self("s_waitcnt " + " ".join(parts))


def xf(n):
    return f"a[{4*n}:{4*n+3}]" if n < 64 else f"v[{224+4*(n-64)}:{224+4*(n-64)+3}]"

def vr(b, n=4):
    return f"v[{b}:{b+n-1}]"

V_DMA = 1
V_TR1 = 2
V_TR2 = 4
V_HW = 6
V_XR = 7
V_FS = 9
V_DMA2 = 10
V_LANE = 11; V_C = 13; V_Q = 14
V_EO = 12
AF = 16
ACC = 32
ACC2 = 64
ET = 96
GREG = 64
GX = 80
R = 112
HXF = 184
V_HA = 32
V_HR = 42
FT = 128
S_C = 3; S_M = 4; S_W = 5
SRD_X = 8; SRD_A = 12; SRD_B = 16; SRD_WS = 20
S_WD = 24
S_M0 = 36; S_LOOP = 37; S_L = 39
S_KOFF = 40
S_FS = 58
S_T0 = 60


def gen_k1(name=KN + "_kernel", dbg=None, fine=False):
    k = Kernel(name, (256, 1, 1), (256, 1, 1), LDS1, 512, accum=256)
    e = Em(k)
    END = k.label("end")
    k("s_cmp_ge_u32 s2, 256")
    k(f"s_cbranch_scc1 {END} ; @taken 0")
    tsn = [0]
    def ts():
        if dbg:
            k(f"s_memrealtime s[{80+2*tsn[0]}:{81+2*tsn[0]}]"); tsn[0] += 1
    def tsf():
        if fine: ts()
    cyn = [0]
    def cy():
        if dbg:
            k(f"s_memtime s[{26+2*cyn[0]}:{27+2*cyn[0]}]"); cyn[0] += 1
    ts()
    k("s_load_dwordx2 s[60:61], s[0:1], 0")
    k("s_load_dwordx4 s[64:67], s[0:1], 24")
    k("s_load_dwordx4 s[68:71], s[0:1], 48")
    k(f"s_load_dwordx2 s[{S_WD}:{S_WD+1}], s[0:1], 64")
    k("s_load_dwordx2 s[72:73], s[0:1], 88")
    k(f"s_and_b32 s{S_C}, s2, 7")
    k(f"s_lshr_b32 s{S_M}, s2, 3")
    k(f"v_and_b32 v{V_LANE}, 63, v0")
    k("v_lshrrev_b32 v15, 6, v0")
    k(f"v_and_b32 v{V_C}, 15, v{V_LANE}")
    k(f"v_readfirstlane_b32 s{S_W}, v15")
    k(f"v_lshrrev_b32 v{V_Q}, 4, v{V_LANE}")
    XPAT = int(os.environ.get("XPAT", "0"))
    k(f"s_lshl_b32 s6, s{S_M}, 4")
    k(f"s_add_u32 s7, s{S_W}, 1")
    k("s_lshr_b32 s7, s7, 1")
    k("s_lshl_b32 s7, s7, 10")
    k(f"s_cmp_ge_u32 s{S_W}, 2")
    k("s_cselect_b32 s38, 512, 0")
    def xrow(vd, vc, vp):
        k(f"v_add_u32 v15, s6, v{vc}")
        k(f"s_bitcmp1_b32 s{S_W}, 0")
        k("s_cselect_b64 vcc, -1, 0")
        k(f"v_sub_u32 v{vd}, s7, v15")
        k("v_add_u32 v105, s7, v15")
        k(f"v_cndmask_b32 v{vd}, v105, v{vd}, vcc")
        k("v_cmp_eq_u32 vcc, 0, v15")
        k("v_mov_b32 v105, s38")
        k("s_nop 0")
        k("v_cndmask_b32 v105, 0, v105, vcc")
        k(f"v_sub_u32 v{vd}, v{vd}, v105")
        k(f"v_mul_u32_u24 v{vd}, 0x480, v{vd}")
        k(f"v_lshlrev_b32 v105, 4, v{vp}")
        k(f"v_add_u32 v{vd}, v{vd}, v105")
    if XPAT == 0:
        xrow(104, V_C, V_Q)
    else:
        k(f"v_lshrrev_b32 v106, 3, v{V_LANE}")
        k(f"v_and_b32 v107, 7, v{V_LANE}")
        xrow(104, 106, 107)
        k("v_add_u32 v106, 8, v106")
        xrow(103, 106, 107)
    k("s_waitcnt lgkmcnt(0)")
    srd(k, SRD_X, 60, 2048 * 1152)
    for ks in range(18):
        if XPAT == 0:
            e.vmem(f"buffer_load_dwordx4 {vr(R+72+4*ks)}, v104, s[{SRD_X}:{SRD_X+3}], 0 offen offset:{64*ks}", ('x', ks))
        else:
            e.vmem(f"buffer_load_dwordx4 {vr(R+72+4*ks)}, v{104 - (ks & 1)}, s[{SRD_X}:{SRD_X+3}], 0 offen offset:{128*(ks//2)}", ('x', ks))
    tsf()
    def haddr(vd, sT, sH8, sK, sub):
        k(f"s_lshl_b32 s74, s{sT}, 4")
        k(f"s_add_u32 s74, s74, {sH8}")
        k(f"v_lshrrev_b32 v106, 3, v{V_LANE}")
        k("v_add_u32 v106, s74, v106")
        k("s_movk_i32 s75, 288")
        k("v_cmp_lt_u32 vcc, s75, v106")
        k("v_subrev_u32 v107, s75, v106")
        k("v_mov_b32 v108, s64"); k("v_mov_b32 v109, s65")
        k(f"v_mov_b32 v{vd}, s66"); k(f"v_mov_b32 v{vd+1}, s67")
        k("v_cndmask_b32 v106, v106, v107, vcc")
        k(f"v_cndmask_b32 v{vd}, v108, v{vd}, vcc")
        k(f"v_cndmask_b32 v{vd+1}, v109, v{vd+1}, vcc")
        k("v_mul_u32_u24 v106, 0x480, v106")
        k(f"s_lshr_b32 s74, {sH8}, 1")
        k(f"v_lshrrev_b32 v107, 4, v{V_LANE}")
        k("v_add_u32 v107, s74, v107")
        k(f"v_and_b32 v108, 7, v{V_LANE}")
        k("v_xor_b32 v107, v107, v108")
        k("v_lshlrev_b32 v107, 4, v107")
        k("v_add_u32 v106, v106, v107")
        k(f"v_add_u32 v106, {sK}, v106")
        k(f"v_add_co_u32 v{vd}, vcc, v{vd}, v106")
        k("s_nop 1")
        k(f"v_addc_co_u32 v{vd+1}, vcc, 0, v{vd+1}, vcc")
        if sub:
            k(f"v_subrev_co_u32 v{vd}, vcc, {sub}, v{vd}")
            k("s_nop 1")
            k(f"v_subbrev_co_u32 v{vd+1}, vcc, 0, v{vd+1}, vcc")
    def prefetch():
        nsub = 128 // PF_STRIDE
        k(f"s_lshl_b32 s74, s{S_M}, 2")
        k(f"s_add_u32 s74, s74, s{S_W}")
        for i in range(2):
            k(f"s_add_u32 s75, s74, {128*i}")
            k("s_cmp_ge_u32 s75, 81"); k("s_cselect_b32 s78, 1, 0")
            k("s_cmp_ge_u32 s75, 162"); k("s_addc_u32 s78, s78, 0")
            k("s_mul_i32 s79, s78, 81")
            k("s_sub_u32 s79, s75, s79")
            k("s_lshl_b32 s79, s79, 6")
            k(f"v_add_u32 v104, s79, v{V_LANE}")
            k("v_mul_u32_u24 v105, 7282, v104")
            k("v_lshrrev_b32 v105, 16, v105")
            k("v_mul_u32_u24 v106, 9, v105")
            k("v_sub_u32 v106, v104, v106")
            k("v_lshlrev_b32 v106, 7, v106")
            k("s_cmp_eq_u32 s78, 2")
            k("s_movk_i32 s79, 1152")
            k("s_cselect_b32 s79, s79, 9216")
            k(f"s_cselect_b32 s28, s{S_WD}, s68"); k(f"s_cselect_b32 s29, s{S_WD+1}, s69")
            k(f"s_mul_i32 s32, s{S_C}, 1152")
            k(f"s_mul_i32 s33, s{S_C}, {576*1152}")
            k("s_cselect_b32 s32, s33, s32")
            k("s_cmp_eq_u32 s78, 1")
            k("s_cselect_b32 s28, s70, s28"); k("s_cselect_b32 s29, s71, s29")
            k("s_cmp_ge_u32 s75, 243")
            k(f"s_cselect_b32 s30, 0, {576*9216}")
            k("s_mov_b32 s31, 0x00020000")
            k("v_mul_lo_u32 v105, v105, s79")
            k("v_add_u32 v105, v105, v106")
            for u in range(nsub):
                e.vmem(f"buffer_load_dword v{PF_DST}, v105, s[28:31], s32 offen offset:{u*PF_STRIDE} ; @dummy", ('pf', i, u))
    S_T = 76; S_TX = 77
    k(f"s_lshl_b32 s{S_T}, s{S_C}, 2")
    k(f"s_add_u32 s{S_T}, s{S_T}, s{S_W}")
    k(f"s_and_b32 s{S_TX}, s{S_C}, 3")
    k(f"s_add_u32 s{S_TX}, s{S_TX}, 32")
    k(f"s_lshl_b32 s{S_M0}, s{S_W}, 11")
    k(f"s_lshl_b32 s78, s{S_W}, 7")
    haddr(V_HA + 4, S_TX, 0, "s78", 0)
    haddr(V_HA + 6, S_TX, 8, "s78", 1024)
    k(f"s_add_u32 m0, s{S_M0}, {7*SLOT}")
    k("s_nop 0")
    e.vmem(f"global_load_lds_dwordx4 v[{V_HA+4}:{V_HA+5}], off ; @W hx", ('hx', 0))
    e.vmem(f"global_load_lds_dwordx4 v[{V_HA+6}:{V_HA+7}], off offset:1024 ; @W hx", ('hx', 1))
    k(f"s_add_u32 m0, s{S_M0}, {8*SLOT-512}")
    k("s_nop 0")
    e.vmem(f"global_load_lds_dwordx4 v[{V_HA+4}:{V_HA+5}], off offset:512 ; @W hx", ('hx', 2))
    e.vmem(f"global_load_lds_dwordx4 v[{V_HA+6}:{V_HA+7}], off offset:1536 ; @W hx", ('hx', 3))
    k(f"s_and_b32 s79, s{S_W}, 1")
    k("s_lshl_b32 s78, s79, 10")
    k(f"s_add_u32 m0, s78, {HX8}")
    k("s_lshl_b32 s79, s79, 3")
    k("s_movk_i32 s78, 1024")
    haddr(V_HA + 8, S_TX, "s79", "s78", 0)
    e.vmem(f"global_load_lds_dwordx4 v[{V_HA+8}:{V_HA+9}], off ; @W hx", ('hx', 4))
    haddr(V_HA, S_T, 0, 0, 0)
    haddr(V_HA + 2, S_T, 8, 0, 1024)
    def dma(idx, live_idx=None):
        slot = idx % NSLOT
        if idx < HOFF:
            return [
                (1, lambda: e(f"s_add_u32 m0, s{S_M0}, {slot*SLOT - 128*idx}")),
                (1, lambda: e.vmem(f"global_load_lds_dwordx4 v[{V_HA}:{V_HA+1}], off offset:{128*idx}", ('dma', idx, 0))),
                (1, lambda: e.vmem(f"global_load_lds_dwordx4 v[{V_HA+2}:{V_HA+3}], off offset:{128*idx+1024}", ('dma', idx, 1))),
            ]
        if idx < HOFF + 162: so = S_KOFF + (idx - HOFF) % 18
        else: so = S_KOFF + (idx - HOFF - 162) % 9
        return [
            (1, lambda: e(f"s_add_u32 m0, s{S_M0}, {slot*SLOT}")),
            (1, lambda: e.vmem(f"buffer_load_dwordx4 v{V_DMA}, s[{SRD_A}:{SRD_A+3}], s{so} offen lds", ('dma', idx, 0))),
            (1, lambda: e.vmem(f"buffer_load_dwordx4 v{V_DMA}, s[{SRD_B}:{SRD_B+3}], s{so} offen offset:1024 lds", ('dma', idx, 1))),
        ]
    def dma_now(idx):
        f = dma(idx)
        f[0][1](); k("s_nop 0"); f[1][1](); f[2][1]()
    NPRE = int(os.environ.get("NPRE", "3"))
    for idx in range(NPRE): dma_now(idx)
    srd(k, SRD_A, 68, 576 * 9216)
    k(f"s_sub_u32 s{SRD_B}, s70, 1024")
    k(f"s_subb_u32 s{SRD_B+1}, s71, 0")
    k(f"s_mov_b32 s{SRD_B+2}, {576*9216+1024}")
    k(f"s_mov_b32 s{SRD_B+3}, 0x00020000")
    srd(k, SRD_WS, 72, WS_SIZE)
    for ks in range(18):
        k(f"s_mov_b32 s{S_KOFF+ks}, {ks*32*9216}")
    k(f"s_mov_b32 s{S_L}, {hex(f2u(LOG2E))}")
    PFPOS = int(os.environ.get("PFPOS", "1"))
    if PF and PFPOS == 0:
        prefetch()
    k(f"v_lshrrev_b32 v104, 3, v{V_LANE}")
    k(f"v_and_b32 v105, 7, v{V_LANE}")
    k(f"s_lshl_b32 s74, s{S_W}, 3")
    k("v_add_u32 v106, s74, v104")
    k(f"v_bfe_u32 v107, v{V_LANE}, 4, 1")
    k(f"s_and_b32 s75, s{S_W}, 1")
    k("s_lshl_b32 s75, s75, 1")
    k("v_add_u32 v107, s75, v107")
    k("v_lshlrev_b32 v107, 1, v107")
    k("v_xor_b32 v107, v105, v107")
    k("v_lshlrev_b32 v107, 4, v107")
    k("s_movk_i32 s74, 0x2400")
    k(f"v_mul_lo_u32 v{V_DMA}, v106, s74")
    k(f"v_add_u32 v{V_DMA}, v{V_DMA}, v107")
    k(f"s_mul_i32 s74, s{S_C}, 1152")
    k(f"v_add_u32 v{V_DMA}, s74, v{V_DMA}")
    k("v_and_b32 v106, 3, v104")
    k("v_lshrrev_b32 v104, 2, v104")
    k("v_lshlrev_b32 v104, 4, v104")
    k("v_add_u32 v106, v106, v104")
    k(f"s_lshl_b32 s74, s{S_W}, 2")
    k(f"s_mul_i32 s75, s{S_C}, 576")
    k("s_add_u32 s74, s74, s75")
    k("v_add_u32 v106, s74, v106")
    k("v_mul_u32_u24 v106, 0x480, v106")
    k(f"v_add_u32 v{V_DMA2}, v106, v107")

    k(f"v_bfe_u32 v104, v{V_LANE}, 2, 2")
    k(f"v_and_b32 v105, 3, v{V_LANE}")
    k("v_lshrrev_b32 v106, 1, v105")
    k(f"s_lshl_b32 s74, s{S_W}, 1")
    k("v_add_u32 v106, s74, v106")
    k("v_and_b32 v105, 1, v105")
    k("v_lshlrev_b32 v105, 3, v105")
    k("v_lshrrev_b32 v107, 1, v104")
    k(f"v_and_b32 v108, 1, v{V_Q}")
    k("v_lshlrev_b32 v109, 1, v108")
    k("v_add_u32 v107, v107, v109")
    k("v_lshlrev_b32 v107, 1, v107")
    k("v_xor_b32 v107, v106, v107")
    k("v_lshlrev_b32 v107, 4, v107")
    k(f"v_lshlrev_b32 v{V_TR1}, 11, v{V_Q}")
    k("v_lshlrev_b32 v109, 7, v104")
    k(f"v_add_u32 v{V_TR1}, v{V_TR1}, v109")
    k(f"v_add_u32 v{V_TR1}, v{V_TR1}, v107")
    k(f"v_add_u32 v{V_TR1}, v{V_TR1}, v105")
    k(f"v_add_u32 v{V_TR1+1}, 0x10000, v{V_TR1}")
    k(f"v_lshlrev_b32 v{V_XR}, 4, v{V_LANE}")
    k(f"v_add_u32 v{V_XR}, {XB}, v{V_XR}")
    k(f"v_add_u32 v{V_XR+1}, 0x10000, v{V_XR}")
    k(f"v_lshrrev_b32 v104, 1, v{V_C}")
    k(f"v_xor_b32 v104, v{V_Q}, v104")
    k(f"v_lshlrev_b32 v105, 3, v{V_C}")
    k("v_or_b32 v104, v104, v105")
    k(f"v_lshlrev_b32 v{V_HR+4}, 4, v104")
    k(f"v_add_u32 v{V_HR}, s{S_M0}, v{V_HR+4}")
    k(f"v_xor_b32 v{V_HR+1}, 64, v{V_HR}")
    k(f"v_add_u32 v{V_HR+2}, 0x10000, v{V_HR}")
    k(f"v_add_u32 v{V_HR+3}, 0x10000, v{V_HR+1}")
    k(f"v_xor_b32 v{V_HR+5}, 64, v{V_HR+4}")
    k(f"v_add_u32 v{V_HR+6}, {HX8}, v{V_HR+4}")
    k(f"v_add_u32 v{V_HR+7}, {HX8}, v{V_HR+5}")
    k(f"v_add_u32 v{V_HR+4}, {7*SLOT}, v{V_HR+4}")
    k(f"v_add_u32 v{V_HR+5}, {7*SLOT}, v{V_HR+5}")
    k(f"s_and_b32 s74, s{S_W}, 1")
    k("s_lshl_b32 s74, s74, 3")
    k(f"s_lshr_b32 s75, s{S_W}, 1")
    k("s_lshl_b32 s75, s75, 12")
    k("s_add_u32 s74, s74, s75")
    k(f"v_add_u32 v{V_HW}, s74, v{V_XR}")
    k(f"v_lshlrev_b32 v{V_FS}, 9, v108")
    k(f"v_and_b32 v104, 1, v{V_C}")
    k("v_lshlrev_b32 v104, 8, v104")
    k(f"v_add_u32 v{V_FS}, v{V_FS}, v104")
    k(f"v_lshrrev_b32 v104, 1, v{V_C}")
    k("v_lshlrev_b32 v104, 5, v104")
    k(f"v_add_u32 v{V_FS}, v{V_FS}, v104")
    k(f"v_lshrrev_b32 v104, 1, v{V_Q}")
    k("v_lshlrev_b32 v104, 4, v104")
    k(f"v_add_u32 v{V_FS}, v{V_FS}, v104")
    k(f"s_mul_i32 s{S_FS}, s{S_C}, {FP_CHUNK}")
    k(f"s_lshl_b32 s74, s{S_W}, 16")
    k(f"s_add_u32 s{S_FS}, s{S_FS}, s74")
    k(f"s_lshl_b32 s74, s{S_M}, 11")
    k(f"s_add_u32 s{S_FS}, s{S_FS}, s74")
    k(f"s_add_u32 s{S_FS}, s{S_FS}, {FP_OFF}")
    k(f"s_and_b32 s74, s{S_M}, 1")
    k("s_lshl_b32 s74, s74, 9")
    k(f"v_lshrrev_b32 v104, 1, v{V_Q}")
    k("v_lshlrev_b32 v104, 8, v104")
    k(f"v_lshlrev_b32 v105, 4, v{V_C}")
    k("v_add_u32 v104, v104, v105")
    k("v_lshlrev_b32 v105, 3, v108")
    k("v_add_u32 v104, v104, v105")
    k(f"v_add_u32 v{V_EO}, s74, v104")

    if PFPOS == 1:
        for idx in range(NPRE, AHEAD): dma_now(idx)
        if PF: prefetch()
    tsf()
    S_ONE = 60; S_LO = 61; S_HI = 62
    k(f"s_mov_b32 s{S_ONE}, 0x3f803f80")
    k(f"s_mov_b32 s{S_LO}, 0x00003f80")
    k(f"s_mov_b32 s{S_HI}, 0x3f800000")
    raw = lambda i: R + 72 + i
    for ks in range(18):
        e.wait(vm=('x', ks))
        for j in range(4):
            i = 4 * ks + j
            c_in = "0" if ks == 0 else f"v{104+j}"
            k(f"v_dot2_f32_bf16 v{104+j}, v{raw(i)}, s{S_ONE}, {c_in}")
    tsf()
    if PFPOS == 0:
        for idx in range(NPRE, AHEAD): dma_now(idx)
    k("v_add_f32 v104, v104, v105"); k("v_add_f32 v106, v106, v107"); k("v_add_f32 v104, v104, v106")
    def qreduce(v, t):
        k(f"v_mov_b32 v{t}, v{v}"); k("s_nop 1")
        k(f"v_permlane32_swap_b32 v{v}, v{t}"); k(f"v_add_f32 v{v}, v{v}, v{t}")
        k(f"v_mov_b32 v{t}, v{v}"); k("s_nop 1")
        k(f"v_permlane16_swap_b32 v{v}, v{t}"); k(f"v_add_f32 v{v}, v{v}, v{t}")
    qreduce(104, 105)
    k(f"v_mul_f32 v108, {hex(f2u(-1.0/576))}, v104")
    for i in range(72):
        k(f"v_dot2_f32_bf16 v{R+2*i}, v{raw(i)}, s{S_LO}, v108")
        k(f"v_dot2_f32_bf16 v{R+2*i+1}, v{raw(i)}, s{S_HI}, v108")
    for i in range(72):
        a = 104 + 2 * (i % 2)
        if i < 2: k(f"v_pk_mul_f32 v[{a}:{a+1}], v[{R+2*i}:{R+2*i+1}], v[{R+2*i}:{R+2*i+1}]")
        else: k(f"v_pk_fma_f32 v[{a}:{a+1}], v[{R+2*i}:{R+2*i+1}], v[{R+2*i}:{R+2*i+1}], v[{a}:{a+1}]")
    k("v_add_f32 v104, v104, v105"); k("v_add_f32 v106, v106, v107"); k("v_add_f32 v104, v104, v106")
    qreduce(104, 105)
    k(f"s_mov_b32 s63, {hex(f2u(1e-5))}")
    k(f"s_mov_b32 s74, {hex(f2u(1.0/576))}")
    k("v_mov_b32 v105, s63")
    k("v_fma_f32 v104, v104, s74, v105")
    k("v_rsq_f32 v104, v104")
    k("s_nop 0")
    k(f"v_mul_f32 v108, {hex(f2u(LOG2E))}, v104")
    k(f"s_lshl_b32 s74, s{S_W}, 10")
    k(f"v_add_u32 v110, s74, v{V_XR}")
    k(f"v_add_u32 v111, 0x10000, v110")
    for ks in range(18):
        for j in range(4):
            i = 4 * ks + j
            k(f"v_pk_mul_f32 v[{R+2*i}:{R+2*i+1}], v[{R+2*i}:{R+2*i+1}], v[108:109] op_sel_hi:[1,0]")
        for j in range(4):
            i = 4 * ks + j
            k(f"v_cvt_pk_bf16_f32 v{R+i}, v{R+2*i}, v{R+2*i+1}")
        off = ks * 4096
        if ks == 12: e.wait(lg=('xw', 4))
        e.lds(f"ds_write_b128 v{110 if off < 65536 else 111}, {vr(R+4*ks)} offset:{off % 65536} ; @W x", ('xw', ks))
    tsf()
    e.wait(vm=('dma', NB, 1), lg='all')
    ts()
    k("s_barrier")
    def trreads(idx):
        slot = idx % NSLOT
        b = idx % 2
        base = (slot * SLOT) % 65536
        out = []
        if idx < HOFF:
            for n in range(2):
                va = V_HR + n + (2 if slot == 8 else 0)
                d = AF + 8 * b + 4 * n
                out.append((1, (lambda d=d, n=n, va=va: e.lds(f"ds_read_b128 {vr(d)}, v{va} offset:{base}", ('tr', idx, n)))))
            return out
        va = V_TR1 + (1 if slot == 8 else 0)
        offs = [0, 512, 1024, 1536]
        for n, o in enumerate(offs):
            d = AF + 8 * b + 2 * n
            out.append((1, (lambda d=d, o=o, n=n: e.lds(f"ds_read_b64_tr_b16 v[{d}:{d+1}], v{va} offset:{base+o}", ('tr', idx, n)))))
        return out
    def xread(n):
        va = V_XR if n < 64 else V_XR + 1
        return (1, lambda: e.lds(f"ds_read_b128 {xf(n)}, v{va} offset:{(n*1024) % 65536} ; @R x 18", ('xr', n)))
    def hxread(ks):
        p_, n = ks // 2, ks % 2
        va = V_HR + 4 + n if p_ < 8 else V_HR + 6 + n
        off = p_ * 2048 if p_ < 8 else 0
        e.lds(f"ds_read_b128 {vr(HXF+4*ks)}, v{va} offset:{off} ; @R hx 5", ('hxr', ks))
    rest = [f for _, f in trreads(0)] + [xread(n)[1] for n in range(8)]
    for ks in range(14): hxread(ks)
    for ks in range(18):
        e.wait(lg=('hxr', ks))
        a_ = 96 + 4 * (ks % 2)
        cin = "0" if ks < 2 else vr(a_)
        k(f"v_mfma_f32_16x16x32_bf16 {vr(a_)}, {vr(R+4*ks)}, {vr(HXF+4*ks)}, {cin}")
        if ks + 14 < 18: hxread(ks + 14)
        elif rest: rest.pop(0)()
    while rest: rest.pop(0)()
    k(f"v_lshlrev_b32 v104, 4, v{V_LANE}")
    k(f"s_lshl_b32 s74, s{S_W}, 10")
    k(f"s_add_u32 s74, s74, {SCR}")
    k(f"v_add_u32 v105, s74, v104")
    k(f"v_add_u32 v104, {SCR}, v104")
    k("s_nop 4")
    for r in range(4):
        k(f"v_add_f32 v{96+r}, v{96+r}, v{100+r}")
    e.lds(f"ds_write_b128 v105, {vr(96)} ; @W sc")
    ts()

    def fold(G, sT, tile_is_extra):
        L = []
        V = lambda s: L.append((1, lambda s=s: e(s)))
        sg = FT
        U = FT + 4; Vv = FT + 8; E = FT + 12; O = FT + 16; Zr = FT + 20; t = FT + 1
        P = FT + 24
        V(f"s_lshl_b32 s74, s{sT}, 4")
        V(f"v_add_u32 v{t}, s74, v{V_C}")
        V(f"s_movk_i32 s75, 288")
        V(f"v_cmp_lt_u32 vcc, s75, v{t}")
        V(f"v_mov_b32 v{sg}, 1.0")
        V(f"v_lshlrev_b32 v{t+1}, 2, v{t}")
        V(f"v_cndmask_b32 v{sg}, v{sg}, -1.0, vcc")
        L.pop()
        V(f"v_mov_b32 v{t+2}, -1.0")
        V(f"v_cndmask_b32 v{sg}, v{sg}, v{t+2}, vcc")
        for r in range(4):
            V(f"v_fma_f32 v{U+r}, v{sg}, v{G+12+r}, v{G+r}")
            V(f"v_fma_f32 v{Vv+r}, v{sg}, v{G+4+r}, v{G+8+r}")
        for r in range(4):
            V(f"v_add_f32 v{E+r}, v{U+r}, v{Vv+r}")
            V(f"v_sub_f32 v{O+r}, v{U+r}, v{Vv+r}")
        V(f"s_cmp_eq_u32 s{S_M}, 0\ns_cselect_b32 s74, 16, 0")
        V(f"v_cmp_gt_u32 vcc, s74, v{V_LANE}")
        V(f"v_add_f32 v{U}, v{G}, v{G+4}")
        V(f"v_sub_f32 v{U+1}, v{G}, v{G+4}")
        V(f"v_fma_f32 v{Zr}, v{sg}, v{G+12}, v{G+8}")
        V(f"v_cndmask_b32 v{E}, v{E}, v{U}, vcc")
        V(f"v_cndmask_b32 v{O}, v{O}, v{U+1}, vcc")
        V(f"v_mov_b32 v{t+2}, {hex(OOB)}")
        V(f"v_cndmask_b32 v{t+1}, v{t+2}, v{t+1}, vcc")
        V(f"v_cvt_pk_bf16_f32 v{P}, v{E}, v{E+1}")
        V(f"v_cvt_pk_bf16_f32 v{P+1}, v{E+2}, v{E+3}")
        V(f"v_cvt_pk_bf16_f32 v{P+2}, v{O}, v{O+1}")
        V(f"v_cvt_pk_bf16_f32 v{P+3}, v{O+2}, v{O+3}")
        V(f"s_lshl_b32 s74, s{sT}, 14")
        V(f"s_lshr_b32 s75, s{S_M}, 1")
        V(f"s_lshl_b32 s75, s75, 10")
        V(f"s_add_u32 s74, s74, s75")
        if tile_is_extra:
            V(f"s_lshr_b32 s75, s{S_C}, 2")
            V(f"s_or_b32 s75, s75, s{S_W}")
            V(f"s_cmp_eq_u32 s75, 0\ns_cselect_b32 s75, 0, {hex(OOB)}")
            V(f"v_or_b32 v{t+3}, s75, v{V_EO}")
            V(f"v_or_b32 v{t+1}, s75, v{t+1}")
            veo = t + 3
        else:
            veo = V_EO
        V(f"s_add_u32 s75, s74, {EO_PAR}")
        L.append((1, lambda: e.vmem(f"buffer_store_dwordx2 v[{P}:{P+1}], v{veo}, s[{SRD_WS}:{SRD_WS+3}], s74 offen sc1")))
        L.append((1, lambda: e.vmem(f"buffer_store_dwordx2 v[{P+2}:{P+3}], v{veo}, s[{SRD_WS}:{SRD_WS+3}], s75 offen sc1")))
        V(f"s_mov_b32 s74, {Z_OFF}")
        L.append((1, lambda: e.vmem(f"buffer_store_dword v{Zr}, v{t+1}, s[{SRD_WS}:{SRD_WS+3}], s74 offen sc1")))
        return L

    def epi1(G):
        b = G % 2
        L = []
        V = lambda c, s: L.append((c, lambda s=s: e(s)))
        for rb in range(4):
            g = ACC + 32 * b + 4 * rb; u = g + 16
            t = ET + 12 * (rb % 2); p = t + 4; h = t + 8
            for r in range(4): V(2, f"v_exp_f32 v{t+r}, -v{g+r}")
            for r in range(4): V(1, f"v_mul_f32 v{p+r}, v{g+r}, v{u+r}")
            for r in range(4): V(1, f"v_fma_f32 v{t+r}, v{t+r}, s{S_L}, s{S_L}")
            for r in range(4): V(2, f"v_rcp_f32 v{t+r}, v{t+r}")
            for r in range(4): V(1, f"v_mul_f32 v{p+r}, v{p+r}, v{t+r}")
            V(1, f"v_cvt_pk_bf16_f32 v{h}, v{p}, v{p+1}")
            V(1, f"v_cvt_pk_bf16_f32 v{h+1}, v{p+2}, v{p+3}")
            L.append((1, lambda h=h, rb=rb: e.lds(f"ds_write_b64 v{V_HW}, v[{h}:{h+1}] offset:{rb*1024} ; @W h {rb}")))
        V(1, f"v_add_u32 v{V_HW}, {2*4096}, v{V_HW}")
        return L

    def epi2(CG):
        b = CG % 2
        L = []
        V = lambda s: L.append((1, lambda s=s: e(s)))
        for P in range(2):
            a0 = ACC2 + 16 * b + 8 * P; a1 = a0 + 4
            t = ET + 4 * P
            V(f"v_cvt_pk_bf16_f32 v{t}, v{a0}, v{a0+1}")
            V(f"v_cvt_pk_bf16_f32 v{t+1}, v{a0+2}, v{a0+3}")
            V(f"v_cvt_pk_bf16_f32 v{t+2}, v{a1}, v{a1+1}")
            V(f"v_cvt_pk_bf16_f32 v{t+3}, v{a1+2}, v{a1+3}")
        for P in range(2):
            t = ET + 4 * P
            V(f"v_permlane16_swap_b32 v{t}, v{t+2}")
            V(f"v_permlane16_swap_b32 v{t+1}, v{t+3}")
        for P in range(2):
            t = ET + 4 * P
            L.append((1, lambda t=t, P=P: e.vmem(f"buffer_store_dwordx4 {vr(t)}, v{V_FS}, s[{SRD_WS}:{SRD_WS+3}], s{S_FS} offen offset:{1024*P} sc1")))
        V(f"s_add_u32 s{S_FS}, s{S_FS}, {4*65536}")
        return L

    def step(j, mfmas, extra, pre_lg=None):
        if j % NB == 0:
            e.wait(vm=('dma', j + NB, 1), lg='all'); e("s_barrier")
        else:
            e.wait(lg=pre_lg or ('tr', j, 3))
        fill = trreads(j + 1)
        rest = dma(j + AHEAD)
        ex = list(extra)
        seq = fill + [rest[0]]
        if ex: seq.append(ex.pop(0))
        seq.append(rest[1])
        if ex: seq.append(ex.pop(0))
        seq.append(rest[2])
        seq += ex
        i0 = len(fill)
        if len(seq) > i0 + 1 and seq[i0] is rest[0] and seq[i0 + 1] is rest[1]:
            seq.insert(i0 + 1, (0, lambda: e("s_nop 0")))
        tot = sum(c for c, _ in seq)
        acc = 0; pos = 0
        for i, mtext in enumerate(mfmas):
            e(mtext)
            target = max(2 * (i + 1), tot * (i + 1) / len(mfmas)) if tot <= 16 else tot * (i + 1) / len(mfmas)
            while pos < len(seq) and acc + seq[pos][0] <= target + 0.01:
                seq[pos][1](); acc += seq[pos][0]; pos += 1
        while pos < len(seq):
            seq[pos][1](); pos += 1

    def split(L, nsteps, first=0):
        tot = sum(c for c, _ in L); out = [[] for _ in range(nsteps)]
        n = nsteps - first; acc = 0; s = first
        for it in L:
            while s < nsteps - 1 and acc >= tot * (s - first + 1) / n - 0.01: s += 1
            out[s].append(it); acc += it[0]
        return out

    def group1(G):
        b = G % 2
        if G == 0:
            L = fold(GREG, S_T, False) + fold(GX, S_TX, True)
            ch = split(L, 12, 0) + [[] for _ in range(6)]
        else:
            ch = split(epi1(G - 1), 18, 1)
        for ks in range(18):
            j = HOFF + 18 * G + ks
            ex = list(ch[ks])
            if ks == 18 - AHEAD:
                if G % 2 == 0 and G > 0:
                    sw = k.label("sw")
                    def swblock(sw=sw):
                        e(f"s_cmp_lg_u32 s{S_LOOP}, 1")
                        e(f"v_add_u32 v{V_DMA}, 128, v{V_DMA}")
                        e(f"s_cbranch_scc1 {sw} ; @taken 1,1,1,0")
                        e(f"v_mov_b32 v{V_DMA}, v{V_DMA2}")
                        e(f"s_mov_b32 s{SRD_A}, s{S_WD}")
                        e(f"s_mov_b32 s{SRD_A+1}, s{S_WD+1}")
                        e(f"s_mov_b32 s{SRD_A+2}, {4608*1152}")
                        e(f"s_add_u32 s{SRD_B}, s{S_WD}, {32*1152-1024}")
                        e(f"s_addc_u32 s{SRD_B+1}, s{S_WD+1}, 0")
                        e(f"s_mov_b32 s{SRD_B+2}, {4608*1152}")
                        for jj in range(9):
                            e(f"s_mov_b32 s{S_KOFF+jj}, {jj*64*1152}")
                        e(f"{sw}:")
                    ex = [(2, swblock)] + ex
                    pre = True
                else:
                    ex = [(1, lambda: e(f"v_add_u32 v{V_DMA}, 128, v{V_DMA}"))] + ex
                first = ex.pop(0)
                first[1]()
            mf = []
            for rb in range(4):
                for gu in range(2):
                    a = ACC + 32 * b + 16 * gu + 4 * rb
                    A = AF + 8 * (j % 2) + 4 * gu
                    cin = "0" if ks == 0 else vr(a)
                    mf.append(f"v_mfma_f32_16x16x32_bf16 {vr(a)}, {vr(A)}, {xf(4*ks+rb)}, {cin}")
            step(j, mf, ex)

    def group2(CG):
        b = CG % 2
        j0 = HOFF + 162 + 9 * CG
        hq = None
        if CG == 0:
            ch = split(epi1(8), 6, 0) + [[], [], []]
            def hread(n):
                va = V_XR if n < 64 else V_XR + 1
                return (1, lambda: e.lds(f"ds_read_b128 {xf(n)}, v{va} offset:{(n*1024) % 65536} ; @R h {n//4}", ('hr', n)))
            for n in range(8): hread(n)[1]()
        else:
            ch = split(epi2(CG - 1), 5, 1) + [[], [], [], []]
        for s in range(9):
            j = j0 + s
            ex = list(ch[s])
            pre_lg = None
            if CG == 0:
                if s < 8:
                    ex = [hread(n) for n in range(8 * (s + 1), 8 * (s + 2))] + ex
            if s == 9 - AHEAD:
                e(f"v_add_u32 v{V_DMA}, 128, v{V_DMA}")
                if CG % 2 == 0 and CG > 0:
                    e(f"s_cmp_eq_u32 s{S_LOOP}, 1")
                    e(f"s_cselect_b32 s{SRD_A+2}, 0, s{SRD_A+2}")
                    e(f"s_cselect_b32 s{SRD_B+2}, 0, s{SRD_B+2}")
            mf = []
            for hf in range(2):
                for rb in range(4):
                    a = ACC2 + 16 * b + 4 * rb
                    A = AF + 8 * (j % 2) + 4 * hf
                    cin = "0" if (s == 0 and hf == 0) else vr(a)
                    mf.append(f"v_mfma_f32_16x16x32_bf16 {vr(a)}, {vr(A)}, {xf(4*(2*s+hf)+rb)}, {cin}")
            if CG == 0:
                pre_lg = ('hr', 8 * s + 7)
            step(j, mf, ex, pre_lg=pre_lg)

    def capture(fn, *a):
        e.buf = []
        fn(*a)
        b = e.buf; e.buf = None
        return b
    import re
    def norm(lines):
        return [re.sub(r'L_\w+', 'LBL', x) for x in lines]

    def hstep(i):
        ex = []
        if i < 8: ex = [xread(n) for n in range(8 * (i + 1), 8 * (i + 2))]
        if i == 0:
            for rb in range(4):
                ex.append((1, lambda rb=rb: e.lds(f"ds_read_b128 {vr(GX+4*rb)}, v104 offset:{rb*1024} ; @R sc 1", ('gx', rb))))
        mf = []
        for kk in range(2):
            for rb in range(4):
                ks = 2 * i + kk
                cin = "0" if ks == 0 else vr(GREG + 4 * rb)
                mf.append(f"v_mfma_f32_16x16x32_bf16 {vr(GREG+4*rb)}, {xf(4*ks+rb)}, {vr(AF+8*(i%2)+4*kk)}, {cin}")
        step(i, mf, ex, pre_lg=('xr', 8 * i + 7))
    for i in range(HOFF): hstep(i)
    ts(); cy()
    for x in capture(group1, 0): k(x)
    bodies = [capture(group1, 1 + 2 * i) + capture(group1, 2 + 2 * i) for i in range(4)]
    for i in range(1, 4):
        assert norm(bodies[i]) == norm(bodies[0]), f"phase-1 loop body {i} differs:\n" + "\n".join(
            f"{a} | {b}" for a, b in zip(norm(bodies[0]), norm(bodies[i])) if a != b)
    L1 = k.label("p1")
    k(f"s_mov_b32 s{S_LOOP}, 4")
    k(f"{L1}:")
    for x in bodies[0]: k(x)
    k(f"s_sub_u32 s{S_LOOP}, s{S_LOOP}, 1")
    k(f"s_cmp_lg_u32 s{S_LOOP}, 0")
    k(f"s_cbranch_scc1 {L1} ; @loop 4")
    ts(); cy()
    for x in capture(group2, 0): k(x)
    bodies = [capture(group2, 1 + 2 * i) + capture(group2, 2 + 2 * i) for i in range(4)]
    for i in range(1, 4):
        assert norm(bodies[i]) == norm(bodies[0]), f"phase-2 loop body {i} differs:\n" + "\n".join(
            f"{a} | {b}" for a, b in zip(norm(bodies[0]), norm(bodies[i])) if a != b)
    L2 = k.label("p2")
    k(f"s_mov_b32 s{S_LOOP}, 4")
    k(f"{L2}:")
    for x in bodies[0]: k(x)
    k(f"s_sub_u32 s{S_LOOP}, s{S_LOOP}, 1")
    k(f"s_cmp_lg_u32 s{S_LOOP}, 0")
    k(f"s_cbranch_scc1 {L2} ; @loop 4")
    ts(); cy()
    k("s_nop 7")
    for c_, f in epi2(8):
        f()
        k("s_nop 1")
    k("s_waitcnt vmcnt(0)")
    ts()
    if dbg:
        dbg_store(k, tsn[0], SRD_WS, dbg, cyc=[26, 28, 30])
    k(f"{END}:")
    k("s_endpgm")
    return k


def dbg_store(k, n, srdws, off, cyc=()):
    k("s_waitcnt lgkmcnt(0)")
    k("v_lshrrev_b32 v1, 6, v0")
    k("s_lshl_b32 s78, s2, 2")
    k("v_add_u32 v1, s78, v1")
    k("v_lshlrev_b32 v1, 6, v1")
    k(f"s_mov_b32 s78, {off}")
    for i in range(n):
        k(f"v_mov_b32 v2, s{80+2*i}")
        k(f"buffer_store_dword v2, v1, s[{srdws}:{srdws+3}], s78 offen offset:{4*i}")
    for i, c in enumerate(cyc):
        k(f"v_mov_b32 v2, s{c}")
        k(f"buffer_store_dword v2, v1, s[{srdws}:{srdws+3}], s78 offen offset:{4*(13+i)}")
    k("s_waitcnt vmcnt(0)")


import struct
def f2u(x):
    return struct.unpack("<I", struct.pack("<f", x))[0]


if __name__ == "__main__":
    k = gen_k1()
    txt = build([k])
    open("k1.s", "w").write(txt)
    import sim
    sim.check(txt, k.name)
```

```python
import re, sys

def parse_regs(tok):
    tok = tok.strip()
    neg = tok.lstrip('-').strip('|')
    m = re.fullmatch(r'([vas])\[(\d+):(\d+)\]', neg)
    if m:
        return [(m.group(1), i) for i in range(int(m.group(2)), int(m.group(3)) + 1)]
    m = re.fullmatch(r'([vas])(\d+)', neg)
    if m:
        return [(m.group(1), int(m.group(2)))]
    if neg in ('vcc',):
        return [('s', 'vcc')]
    if neg in ('vcc_lo', 'vcc_hi'):
        return [('s', 'vcc')]
    if neg == 'm0':
        return [('s', 'm0')]
    if neg in ('exec', 'exec_lo', 'exec_hi'):
        return [('s', 'exec')]
    return []

TRANS = ('v_exp_f32', 'v_log_f32', 'v_rcp_f32', 'v_rsq_f32', 'v_sqrt_f32', 'v_sin_f32', 'v_cos_f32')

class Ins:
    def __init__(self, text, lineno):
        self.text = text
        self.lineno = lineno
        code, _, com = text.partition(';')
        self.com = com.strip()
        code = code.strip()
        parts = code.split(None, 1)
        self.op = parts[0]
        rest = parts[1] if len(parts) > 1 else ''
        ops = [o.strip() for o in rest.split(',')] if rest else []
        mods = []
        if ops:
            last = ops[-1].split()
            ops[-1] = last[0] if last else ''
            mods = last[1:]
        full = rest
        self.mods = full
        clean = re.sub(r'(op_sel|op_sel_hi|neg_lo|neg_hi)\s*:\s*\[[^\]]*\]', '', rest)
        ops = [o.strip() for o in clean.split(',')] if clean.strip() else []
        if ops:
            last = ops[-1].split()
            ops[-1] = last[0] if last else ''
        self.ops = ops
        self.classify()

    def classify(self):
        op, ops = self.op, self.ops
        R = [parse_regs(o) for o in ops]
        self.dst, self.src = [], []
        self.kind = 'other'
        self.lds_dma = False
        if op.startswith('v_mfma'):
            self.kind = 'mfma'
            self.dst = R[0]; self.srcA = R[1]; self.srcB = R[2]; self.srcC = R[3]
            self.src = R[1] + R[2] + R[3]
        elif op.startswith('v_'):
            self.kind = 'valu'
            if op.startswith('v_cmp'):
                self.dst = R[0]; self.src = sum(R[1:], [])
            elif op.startswith('v_permlane') and 'swap' in op:
                self.dst = R[0] + R[1]; self.src = R[0] + R[1]
            elif op.startswith('v_add_co') or op.startswith('v_sub_co') or op.startswith('v_subrev_co'):
                self.dst = R[0] + R[1]; self.src = sum(R[2:], [])
            elif op.startswith('v_addc_co') or op.startswith('v_subb_co') or op.startswith('v_subbrev_co'):
                self.dst = R[0] + R[1]; self.src = sum(R[2:], [])
            else:
                self.dst = R[0]; self.src = sum(R[1:], [])
                if op.startswith('v_cndmask') and len(ops) == 3:
                    self.src = self.src + [('s', 'vcc')]
                if op.startswith('v_fmac') or op.startswith('v_mac') or op.startswith('v_writelane'):
                    self.src = self.src + R[0]
        elif op.startswith('ds_read') or op.startswith('ds_bpermute') or op.startswith('ds_swizzle'):
            self.kind = 'ds'; self.dst = R[0]; self.src = sum(R[1:], [])
        elif op.startswith('ds_write'):
            self.kind = 'ds'; self.src = sum(R, [])
        elif op.startswith('buffer_load'):
            self.kind = 'vmem'
            if re.search(r'\blds\b', self.mods):
                self.lds_dma = True
                self.src = sum(R, []) + [('s', 'm0')]
            else:
                self.dst = R[0]; self.src = sum(R[1:], [])
        elif op.startswith('buffer_store'):
            self.kind = 'vmem'; self.src = sum(R, []); self.stdata = R[0]
        elif op.startswith('global_load_lds'):
            self.kind = 'vmem'; self.lds_dma = True; self.src = sum(R, []) + [('s', 'm0')]
        elif op.startswith('global_load'):
            self.kind = 'vmem'; self.dst = R[0]; self.src = sum(R[1:], [])
        elif op.startswith('global_store'):
            self.kind = 'vmem'; self.src = sum(R, []); self.stdata = R[1]
        elif op.startswith('s_load'):
            self.kind = 'smem'; self.dst = R[0]; self.src = sum(R[1:], [])
        elif op in ('s_waitcnt', 's_barrier', 's_nop', 's_endpgm', 's_setprio', 's_branch', 's_sleep') or op.startswith('s_cbranch'):
            self.kind = 'ctl'
        elif op.startswith('s_cmp'):
            self.kind = 'salu'; self.src = sum(R, []); self.dst = [('s', 'scc')]
        elif op.startswith('s_'):
            self.kind = 'salu'; self.dst = R[0]; self.src = sum(R[1:], [])
            if 'saveexec' in op:
                self.dst = self.dst + [('s', 'exec')]
        self.trans = op.replace('_e64', '').replace('_e32', '') in TRANS


def load(text, kname):
    lines = text.split('\n')
    prog = []; labels = {}
    on = False
    for i, ln in enumerate(lines):
        s = ln.strip()
        if s == kname + ':':
            on = True; continue
        if not on: continue
        if s.startswith('.globl') or s.startswith('.section'):
            break
        if not s or s.startswith(';') or s.startswith('.'):
            continue
        if s.endswith(':') and ' ' not in s:
            labels[s[:-1]] = len(prog); continue
        prog.append(Ins(s, i + 1))
    return prog, labels


def trace(prog, labels, conds):
    out = []; pc = 0; cnt = {}
    while pc < len(prog):
        ins = prog[pc]
        out.append(ins)
        if len(out) > 2000000: raise Exception("trace too long")
        if ins.op == 's_endpgm': break
        if ins.op == 's_branch':
            pc = labels[ins.ops[0]]; continue
        if ins.op.startswith('s_cbranch'):
            m = re.search(r'@loop (\d+)', ins.com)
            taken = False
            if m:
                n = int(m.group(1)); c = cnt.get(pc, 0) + 1
                if c < n: taken = True; cnt[pc] = c
                else: cnt[pc] = 0
            else:
                m = re.search(r'@taken ([01,]+)', ins.com)
                if m:
                    pat = m.group(1).split(','); c = cnt.get(pc, 0)
                    taken = pat[c % len(pat)] == '1'; cnt[pc] = c + 1
                else:
                    m = re.search(r'@cond (\w+)', ins.com)
                    if m: taken = m.group(1) in conds
                    else: raise Exception(f"unannotated branch line {ins.lineno}: {ins.text}")
            if taken:
                pc = labels[ins.ops[0]]; continue
        pc += 1
    return out


def check(text, kname, conds=(), nring=9, verbose=True, quiet=False):
    prog, labels = load(text, kname)
    tr = trace(prog, labels, conds)
    errs = []
    def err(i, msg):
        if len(errs) < 40:
            errs.append(f"[{kname}] line {tr[i].lineno} (t={i}): {msg} :: {tr[i].text}")
    last = {}
    st = 0
    pos = []
    for i, ins in enumerate(tr):
        pos.append(st)
        if ins.op == 's_nop': st += int(ins.ops[0], 0) + 1
        else: st += 1
    wr = {}
    cread = {}
    stdata = {}
    def dist(i, j):
        return pos[i] - pos[j] - 1 if tr[j].op != 's_nop' else 0
    for i, ins in enumerate(tr):
        for r in ins.src:
            if r in wr:
                j = wr[r]; p = tr[j]; d = dist(i, j)
                need = 0
                if p.kind == 'valu' and r[0] in 'va':
                    if ins.kind == 'mfma': need = 2
                    elif ins.op.startswith('v_permlane'): need = 2
                    elif ins.op.startswith('v_readfirstlane') or ins.op.startswith('v_readlane'): need = 1
                    elif p.trans and ins.kind == 'valu' and not ins.trans: need = 1
                    elif p.trans and ins.kind in ('ds', 'vmem'): need = 1
                    elif 'dpp' in ins.mods or 'row_' in ins.mods: need = 2
                if p.kind == 'valu' and r[0] == 's':
                    if ins.kind == 'valu': need = 2
                    elif ins.kind == 'vmem': need = 5
                    elif ins.kind == 'salu': need = 1
                if p.kind == 'mfma':
                    if ins.kind == 'mfma':
                        if r in ins.srcA or r in ins.srcB: need = 8
                        elif ins.srcC == p.dst: need = 0
                        else: need = 6
                    else: need = 8
                if p.kind == 'salu' and r == ('s', 'm0') and ins.lds_dma: need = 1
                if d < need: err(i, f"hazard RAW {r} from line {p.lineno} ({p.op}) dist {d} < {need}")
        for r in ins.dst:
            if r in wr and tr[wr[r]].kind == 'mfma' and ins.kind != 'mfma':
                d = dist(i, wr[r])
                if d < 8: err(i, f"hazard WAW after mfma {r} dist {d} < 8")
            if r in wr and tr[wr[r]].kind == 'mfma' and ins.kind == 'mfma' and ins.dst != tr[wr[r]].dst:
                d = dist(i, wr[r])
                if d < 6: err(i, f"hazard mfma overlap WAW {r} dist {d}")
            if r in cread and ins.kind == 'valu':
                d = dist(i, cread[r])
                if d < 3: err(i, f"hazard WAR srcC {r} dist {d} < 3")
            if r in stdata and ins.kind == 'valu':
                d = dist(i, stdata[r])
                if d < 2: err(i, f"hazard store-data WAR {r} dist {d} < 2")
        for r in ins.dst:
            if ins.kind in ('valu', 'mfma', 'salu'): wr[r] = i
            elif r in wr: del wr[r]
        if ins.kind == 'mfma':
            for r in ins.srcC: cread[r] = i
        if ins.kind == 'vmem' and hasattr(ins, 'stdata') and ('x4' in ins.op or 'x3' in ins.op):
            for r in ins.stdata: stdata[r] = i
    scc_w = None
    for i, ins in enumerate(tr):
        rd = ins.op.startswith('s_cselect') or ins.op.startswith('s_cbranch_scc') or ins.op.startswith('s_addc') or ins.op.startswith('s_subb')
        if rd and scc_w is not None:
            w_ = tr[scc_w]
            ok = w_.op.startswith('s_cmp') or w_.op.startswith('s_bitcmp') if not (ins.op.startswith('s_addc') or ins.op.startswith('s_subb')) else (scc_w == i - 1)
            if not ok: err(i, f"SCC read from {w_.text}")
        if ins.kind == 'salu' and not (ins.op.startswith('s_mov') or ins.op.startswith('s_cselect') or ins.op.startswith('s_mul_i32')):
            scc_w = i
    vq = []; lq = []
    pend = {}
    barriers = []
    dma_idx = -1; rd_idx = -1
    writes = {}
    region_reads = {}
    region_cur = {}
    hcount = {}
    smem_out = []
    def complete(e, i):
        e['done'] = i
        for r in e['dst']:
            if pend.get(r) is e: del pend[r]
    def synced(e, i):
        if e.get('done') is None: return False
        return any(e['done'] <= b < i for b in barriers)
    maxv = maxl = 0
    for i, ins in enumerate(tr):
        if ins.op == 's_waitcnt':
            m = re.search(r'vmcnt\((\d+)\)', ins.text)
            if m:
                n = int(m.group(1))
                assert n <= 63, ins.text
                while len(vq) > n: complete(vq.pop(0), i)
            m = re.search(r'lgkmcnt\((\d+)\)', ins.text)
            if m:
                n = int(m.group(1))
                assert n <= 15, ins.text
                if smem_out and n == 0:
                    for e in smem_out: complete(e, i)
                    smem_out = []
                while len(lq) > n: complete(lq.pop(0), i)
            continue
        if ins.op == 's_barrier':
            barriers.append(i); continue
        for r in ins.src + ins.dst:
            if r in pend and not ('@dummy' in ins.com and '@dummy' in pend[r]['ins'].com and r in ins.dst):
                err(i, f"uses {r} with pending load from line {pend[r]['ins'].lineno}")
        if ins.kind in ('vmem', 'ds', 'smem'):
            e = dict(ins=ins, dst=list(ins.dst), i=i, done=None)
            for r in ins.dst: pend[r] = e
            if ins.kind == 'vmem':
                vq.append(e); maxv = max(maxv, len(vq))
                if len(vq) > 63: err(i, f"vm queue {len(vq)} > 63")
            elif ins.kind == 'ds':
                lq.append(e); maxl = max(maxl, len(lq))
                if len(lq) > 15: err(i, f"lds queue {len(lq)} > 15")
            else: smem_out.append(e)
            c = ins.com
            tagw = tagr = None
            m = re.search(r'@dma s=(\d+) h=(\d)', c)
            if m:
                s, h = int(m.group(1)), int(m.group(2))
                if h == 0: dma_idx += 1
                if dma_idx % nring != s: err(i, f"dma idx {dma_idx} slot {s} mismatch")
                tagw = (f"slot{s}", dma_idx)
            m = re.search(r'@rd s=(\d+) n=(\d)', c)
            if m:
                s, n = int(m.group(1)), int(m.group(2))
                if n == 0: rd_idx += 1
                if rd_idx % nring != s: err(i, f"rd idx {rd_idx} slot {s} mismatch")
                tagr = (f"slot{s}", rd_idx, 2)
            m = re.search(r'@W (\w+)(?: (\w+))?', c)
            if m:
                name = m.group(1)
                if name == 'h':
                    key = m.group(2); g = hcount.get(key, 0); hcount[key] = g + 1
                    tagw = (f"xh{g}", ('h', g))
                elif name == 'x':
                    tagw = ("xall", ('x', 0))
                else:
                    tagw = (name, 0)
            m = re.search(r'@R (\w+)(?: (\w+))?', c)
            if m:
                name = m.group(1)
                if name == 'h':
                    g = int(m.group(2)) // 2
                    tagr = (f"xh{g}", ('h', g), 4)
                elif name == 'x':
                    tagr = ("xall", ('x', 0), int(m.group(2)))
                else:
                    tagr = (name, 0, int(m.group(2) or 1))
            if tagw:
                region, tag = tagw
                rl = list(region_reads.get(region, []))
                if region.startswith('xh'): rl += region_reads.get('xall', [])
                if region in ('slot7', 'slot8'): rl += region_reads.get('hx', [])
                for r_ in rl:
                    if r_['tag'] != tag and not synced(r_, i):
                        err(i, f"LDS WAR: write {tag} to {region} while read at line {r_['ins'].lineno} of {r_['tag']} not barrier-synced")
                        break
                region_reads[region] = [r_ for r_ in region_reads.get(region, []) if not synced(r_, i)]
                region_cur[region] = tag
                writes.setdefault((region, tag), []).append(e)
            if tagr:
                region, tag, nexp = tagr
                e['tag'] = tag
                ws = writes.get((region, tag), [])
                if len(ws) < nexp: err(i, f"LDS RAW: read {tag} from {region}: only {len(ws)} of {nexp} writes issued")
                elif region_cur.get(region) != tag: err(i, f"LDS RAW: {region} holds {region_cur.get(region)} not {tag}")
                else:
                    for w_ in ws:
                        if not synced(w_, i):
                            err(i, f"LDS RAW: read {tag}: write at line {w_['ins'].lineno} not barrier-synced"); break
                region_reads.setdefault(region, []).append(e)
        if ins.op == 's_endpgm':
            if any(e['ins'].lds_dma for e in vq): err(i, "LDS DMA outstanding at endpgm")
    nm = sum(1 for x in tr if x.kind == 'mfma')
    if verbose:
        print(f"sim {kname} conds={conds}: trace {len(tr)} instrs, {nm} mfma, {len(barriers)} barriers, max vm {maxv} max lds {maxl}, dma_idx {dma_idx} rd_idx {rd_idx}, errors {len(errs)}")
    if not quiet:
        for e in errs: print("  ", e)
    return errs

def autofix(text, kname, condlist=((),)):
    for _ in range(200):
        fixed = False
        for conds in condlist:
            errs = check(text, kname, conds, verbose=False, quiet=True)
            for er in errs:
                m = re.search(r'line (\d+) \(t=\d+\): hazard .* dist (-?\d+) < (\d+)', er)
                if m:
                    ln, d, need = int(m.group(1)), int(m.group(2)), int(m.group(3))
                    lines = text.split('\n')
                    lines.insert(ln - 1, f"    s_nop {need - d - 1}")
                    text = '\n'.join(lines)
                    fixed = True
                    break
            if fixed: break
        if not fixed: return text
    raise Exception("autofix did not converge")

if __name__ == "__main__":
    text = open(sys.argv[1]).read()
    check(text, sys.argv[2], tuple(sys.argv[3:]))
```
